```python
import torch

def _softmax(x, axis=-1):
    return torch.softmax(x, dim=axis)
def _gelu(x):
    return torch.nn.functional.gelu(x, approximate="tanh")
def _silu(x):
    return torch.nn.functional.silu(x)
def _sigmoid(x):
    return torch.sigmoid(x)
def _layernorm(x, axis=-1, eps=1e-5):
    m = x.mean(dim=axis, keepdim=True)
    v = x.var(dim=axis, keepdim=True, unbiased=False)
    return (x - m) / torch.sqrt(v + eps)
def _scatter_add(tgt, idx, src, axis=0):
    return tgt.clone().index_add_(axis, idx, src)
def _segment_sum(src, seg, n):
    out = torch.zeros((n,) + src.shape[1:], dtype=src.dtype)
    return out.index_add_(0, seg, src)
def _pad(x, pw):
    flat = tuple(v for pair in reversed(pw) for v in pair)
    return torch.nn.functional.pad(x, flat)

kernel_name = 'interleave_layers__mha_block__glu_gated_geglu__prompt'

def setup_inputs():

    _w = (lambda a: (lambda t: t.to(torch.bfloat16) if t.is_floating_point() else t)(torch.as_tensor(a)))
    def _A_setup():
        B, S, D, H = 1, 2048, 640, 32
        return {
            "x": _w((lambda *s: torch.randn(*s, dtype=torch.bfloat16) * 0.05)(B, S, D)),
            "wqkv": _w((lambda *s: torch.randn(*s, dtype=torch.bfloat16) * 0.05)(D, 3 * D)),
            "wo": _w((lambda *s: torch.randn(*s, dtype=torch.bfloat16) * 0.05)(D, D)),
        }
    _A_in = _A_setup()

    def _B_setup():
        B, S, Dm, Df = 1, 2048, 640, 1728
        return {
            "x": _w((lambda *s: torch.randn(*s, dtype=torch.bfloat16) * 0.05)(B, S, Dm)),
            "w_gate": _w((lambda *s: torch.randn(*s, dtype=torch.bfloat16) * 0.8)(Dm, Df) * (Dm ** -0.5)),
            "w_up": _w((lambda *s: torch.randn(*s, dtype=torch.bfloat16) * 0.8)(Dm, Df) * (Dm ** -0.5)),
            "w_down": _w((lambda *s: torch.randn(*s, dtype=torch.bfloat16) * 0.8)(Df, Dm) * (Df ** -0.5)),
        }
    _B_in = _B_setup()

    return {
        "A_x": _A_in["x"],
        "A_wqkv": _A_in["wqkv"],
        "A_wo": _A_in["wo"],
        "B_x": _B_in["x"],
        "B_w_gate": _B_in["w_gate"],
        "B_w_up": _B_in["w_up"],
        "B_w_down": _B_in["w_down"],
    }

def reference(A_x, A_wqkv, A_wo, B_x, B_w_gate, B_w_up, B_w_down):
    def _A_ref(x, wqkv, wo):
        B, S, D = x.shape
        H = 32
        Dh = D // H
        qkv = (lambda x, *d: x.permute(*d))((x @ wqkv).reshape(B, S, 3, H, Dh), 2, 0, 3, 1, 4)
        q, k, v = qkv[0], qkv[1], qkv[2]
        scores = torch.einsum("bhqd,bhkd->bhqk", q, k) * (Dh ** -0.5)
        p = _softmax(scores, axis=-1)
        o = torch.einsum("bhqk,bhkd->bhqd", p, v)
        return (lambda x, *d: x.permute(*d))(o, 0, 2, 1, 3).reshape(B, S, D) @ wo

    def _B_ref(x, w_gate, w_up, w_down):
        g = torch.einsum("bsd,df->bsf", x, w_gate)
        u = torch.einsum("bsd,df->bsf", x, w_up)
        h = _gelu(g) * u
        return torch.einsum("bsf,fd->bsd", h, w_down)

    x = A_x
    x = x + _A_ref(_layernorm(x, axis=-1), A_wqkv, A_wo)
    x = x + _B_ref(_layernorm(x, axis=-1), B_w_gate, B_w_up, B_w_down)
    x = x + _A_ref(_layernorm(x, axis=-1), A_wqkv, A_wo)
    x = x + _B_ref(_layernorm(x, axis=-1), B_w_gate, B_w_up, B_w_down)
    return x
```

```python
import struct
import sys

NAME = "interleave_layers__mha_block__glu_gated_geglu__prompt"
MB = 1 << 20
OFF_WQKV = 0
OFF_WO = 4 * MB
OFF_WG = 6 * MB
OFF_WU = 9 * MB
OFF_WD = 12 * MB
OFF_CS = 15 * MB
OFF_X = 16 * MB
OFF_ST = 19 * MB
OFF_Q = 20 * MB
OFF_K = 24 * MB
OFF_V = 28 * MB
OFF_O = 32 * MB
OFF_H = 36 * MB
WS_SIZE = 268435456

LOG2E = 1.4426950408889634
QSCALE = LOG2E / (20.0 ** 0.5)


def f32bits(x):
    return struct.unpack("<I", struct.pack("<f", x))[0]


def fhex(x):
    return "0x%08x" % f32bits(x)


class Asm:
    def __init__(self):
        self.lines = []
        self.vm = []
        self.lab = 0

    def __call__(self, s):
        self.lines.append("    " + s)

    def label(self, name):
        self.lines.append(name + ":")

    def newlabel(self, p="L"):
        self.lab += 1
        return "%s_%d" % (p, self.lab)

    def raw(self, s):
        self.lines.append(s)

    def vissue(self, tag):
        self.vm.append(tag)

    def vwait(self, tag):
        if tag not in self.vm:
            return
        idx = len(self.vm) - 1 - self.vm[::-1].index(tag)
        n = len(self.vm) - 1 - idx
        assert n <= 63
        self("s_waitcnt vmcnt(%d)" % n)
        self.vm = self.vm[idx + 1:]

    def vwait_all(self):
        self("s_waitcnt vmcnt(0)")
        self.vm = []

    def text(self):
        return "\n".join(self.lines)


def vr(b, n):
    return "v[%d:%d]" % (b, b + n - 1)


def sr(b, n):
    return "s[%d:%d]" % (b, b + n - 1)


def kernel_begin(a, name):
    a.raw(".globl %s" % name)
    a.raw(".p2align 8")
    a.raw(".type %s,@function" % name)
    a.label(name)


DESCS = []


def kernel_end(a, name, vgpr, sgpr=102, wg_y=False):
    a("s_endpgm")
    acc = (vgpr + 3) // 4 * 4
    DESCS.append("""
.amdhsa_kernel %s
  .amdhsa_next_free_vgpr %d
  .amdhsa_next_free_sgpr %d
  .amdhsa_accum_offset %d
  .amdhsa_group_segment_fixed_size 0
  .amdhsa_kernarg_size 80
  .amdhsa_user_sgpr_count 2
  .amdhsa_user_sgpr_kernarg_segment_ptr 1
  .amdhsa_system_sgpr_workgroup_id_x 1
.end_amdhsa_kernel""" % (name, vgpr, sgpr, acc))


def srd_ws(a, d, wsreg, off, size):
    a("s_add_u32 s%d, s%d, 0x%x" % (d, wsreg, off))
    a("s_addc_u32 s%d, s%d, 0" % (d + 1, wsreg + 1))
    a("s_and_b32 s%d, s%d, 0xffff" % (d + 1, d + 1))
    a("s_mov_b32 s%d, 0x%x" % (d + 2, size))
    a("s_mov_b32 s%d, 0x00020000" % (d + 3))


def srd_ptr(a, d, preg, size):
    a("s_mov_b32 s%d, s%d" % (d, preg))
    a("s_and_b32 s%d, s%d, 0xffff" % (d + 1, preg + 1))
    a("s_mov_b32 s%d, 0x%x" % (d + 2, size))
    a("s_mov_b32 s%d, 0x00020000" % (d + 3))


def bf16r(a, dst, src):
    a("v_cvt_pk_bf16_f32 v%d, v%d, v%d" % (dst, src, src))
    a("v_lshlrev_b32 v%d, 16, v%d" % (dst, dst))


J_QKV = 96 * 10
J_G = 54 * 10
J_D = 20 * 27
J_O = 20 * 16
J_X = 64 * 10
W_QKV0 = 0
W_G0 = W_QKV0 + J_QKV
W_U0 = W_G0 + J_G
W_D0 = W_U0 + J_G
W_O0 = W_D0 + J_D
W_X0 = W_O0 + J_O
W_END = W_X0 + J_X
assert W_END % 4 == 0
WG_CS0 = W_END // 4
NCS = 96 + 54 + 54
K0_WGS = WG_CS0 + NCS


def gen_prep(a):
    name = "prep_kernel"
    kernel_begin(a, name)
    a("s_load_dwordx16 s[4:19], s[0:1], 0")
    a("s_load_dwordx4 s[20:23], s[0:1], 64")
    a("v_lshrrev_b32 v1, 6, v0")
    a("v_and_b32 v0, 63, v0")
    a("s_nop 0")
    a("v_readfirstlane_b32 s24, v1")
    a("v_and_b32 v2, 31, v0")
    a("v_lshrrev_b32 v3, 5, v0")
    a("v_lshlrev_b32 v4, 4, v0")
    a("s_waitcnt lgkmcnt(0)")
    a("s_cmp_ge_u32 s2, %d" % K0_WGS)
    a("s_cbranch_scc1 L_prep_end")
    a("s_cmp_ge_u32 s2, %d" % WG_CS0)
    a("s_cbranch_scc1 L_prep_cs")
    a("s_lshl_b32 s25, s2, 2")
    a("s_add_u32 s25, s25, s24")
    a("s_cmp_ge_u32 s25, %d" % W_X0)
    a("s_cbranch_scc1 L_prep_x")
    a("s_cmp_ge_u32 s25, %d" % W_O0)
    a("s_cbranch_scc1 L_prep_o")
    a("s_cmp_ge_u32 s25, %d" % W_D0)
    a("s_cbranch_scc1 L_prep_selD")
    a("s_cmp_ge_u32 s25, %d" % W_U0)
    a("s_cbranch_scc1 L_prep_selU")
    a("s_cmp_ge_u32 s25, %d" % W_G0)
    a("s_cbranch_scc1 L_prep_selG")
    srd_ptr(a, 28, 6, 640 * 1920 * 2)
    a("s_mov_b32 s32, 3840")
    a("s_mov_b32 s34, s25")
    a("s_mov_b32 s35, 0x%x" % OFF_WQKV)
    a("s_mov_b32 s36, 40")
    a("s_mul_hi_u32 s37, s34, 0x%x" % ((1 << 32) // 10 + 1))
    a("s_mul_i32 s38, s37, 10")
    a("s_sub_u32 s38, s34, s38")
    a("s_lshr_b32 s39, s37, 5")
    a("s_and_b32 s40, s37, 31")
    a("s_mul_i32 s39, s39, 640")
    a("s_mul_i32 s40, s40, 20")
    a("s_add_u32 s39, s39, s40")
    a("v_add_u32 v5, s39, v2")
    a("v_lshlrev_b32 v5, 1, v5")
    a("v_mov_b32 v6, 0x40000000")
    a("v_cmp_gt_u32 vcc, 20, v2")
    a("s_nop 1")
    a("v_cndmask_b32 v5, v6, v5, vcc")
    a("s_branch L_prep_w")
    for lab, ptr, size, ld, j0, dst, units, ks in (
            ("L_prep_selG", 12, 640 * 1728 * 2, 3456, W_G0, OFF_WG, 10, 40),
            ("L_prep_selU", 14, 640 * 1728 * 2, 3456, W_U0, OFF_WU, 10, 40),
            ("L_prep_selD", 16, 1728 * 640 * 2, 1280, W_D0, OFF_WD, 27, 108)):
        a.label(lab)
        srd_ptr(a, 28, ptr, size)
        a("s_mov_b32 s32, %d" % ld)
        a("s_sub_u32 s34, s25, %d" % j0)
        a("s_mov_b32 s35, 0x%x" % dst)
        a("s_mov_b32 s36, %d" % ks)
        a("s_mul_hi_u32 s37, s34, 0x%x" % ((1 << 32) // units + 1))
        a("s_mul_i32 s38, s37, %d" % units)
        a("s_sub_u32 s38, s34, s38")
        a("s_lshl_b32 s39, s37, 5")
        a("v_add_u32 v5, s39, v2")
        a("v_lshlrev_b32 v5, 1, v5")
        a("s_branch L_prep_w")
    a.label("L_prep_w")
    a("s_lshl_b32 s41, s38, 6")
    a("v_lshl_add_u32 v6, v3, 2, s41")
    a("v_mul_lo_u32 v6, v6, s32")
    a("v_add_u32 v6, v6, v5")
    for kt in range(2):
        for s in range(2):
            for g in range(2):
                for j in range(4):
                    row = kt * 32 + 16 * s + 8 * g + j
                    reg = 64 + ((kt * 2 + s) * 4 + g * 2) * 2 + j
                    a("s_mul_i32 s42, s32, %d" % row)
                    a("buffer_load_ushort v%d, v6, s[28:31], s42 offen" % (reg))
    a("s_mul_i32 s43, s37, s36")
    a("s_lshl_b32 s44, s38, 2")
    a("s_add_u32 s43, s43, s44")
    a("s_lshl_b32 s43, s43, 10")
    a("s_add_u32 s43, s43, s35")
    srd_ws(a, 48, 22, 0, WS_SIZE)
    a("s_waitcnt vmcnt(0)")
    for i in range(16):
        a("v_lshl_or_b32 v%d, v%d, 16, v%d" % (16 + i, 64 + 2 * i + 1, 64 + 2 * i))
    for f in range(4):
        a("buffer_store_dwordx4 %s, v4, s[48:51], s43 offen offset:%d" % (vr(16 + 4 * f, 4), f * 1024))
    a("s_branch L_prep_end")

    a.label("L_prep_o")
    srd_ptr(a, 28, 8, 640 * 640 * 2)
    a("s_sub_u32 s34, s25, %d" % W_O0)
    a("s_lshr_b32 s37, s34, 4")
    a("s_and_b32 s38, s34, 15")
    a("s_lshl_b32 s39, s37, 5")
    a("v_add_u32 v5, s39, v2")
    a("v_lshlrev_b32 v5, 1, v5")
    a("s_mul_i32 s41, s38, 40")
    a("v_lshl_add_u32 v6, v3, 2, s41")
    a("s_movk_i32 s32, 1280")
    a("v_mul_lo_u32 v6, v6, s32")
    a("v_add_u32 v6, v6, v5")
    a("v_mov_b32 v7, 0x40000000")
    a("v_cmp_eq_u32 vcc, 0, v3")
    a("s_nop 1")
    a("v_cndmask_b32 v8, v7, v6, vcc")
    for kt in range(2):
        for s in range(2):
            for g in range(2):
                for j in range(4):
                    row = kt * 20 + 16 * s + 8 * g + j
                    reg = 64 + ((kt * 2 + s) * 4 + g * 2) * 2 + j
                    if s == 0:
                        va = 6
                    elif g == 0:
                        va = 8
                    else:
                        va = 7
                    a("s_mov_b32 s42, %d" % (row * 1280))
                    a("buffer_load_ushort v%d, v%d, s[28:31], s42 offen" % (reg, va))
    a("s_lshl_b32 s43, s37, 6")
    a("s_lshl_b32 s44, s38, 2")
    a("s_add_u32 s43, s43, s44")
    a("s_lshl_b32 s43, s43, 10")
    a("s_add_u32 s43, s43, 0x%x" % OFF_WO)
    srd_ws(a, 48, 22, 0, WS_SIZE)
    a("s_waitcnt vmcnt(0)")
    for i in range(16):
        a("v_lshl_or_b32 v%d, v%d, 16, v%d" % (16 + i, 64 + 2 * i + 1, 64 + 2 * i))
    for f in range(4):
        a("buffer_store_dwordx4 %s, v4, s[48:51], s43 offen offset:%d" % (vr(16 + 4 * f, 4), f * 1024))
    a("s_branch L_prep_end")

    a.label("L_prep_x")
    srd_ptr(a, 28, 4, 2048 * 640 * 2)
    a("s_sub_u32 s34, s25, %d" % W_X0)
    a("s_mul_hi_u32 s37, s34, 0x%x" % ((1 << 32) // 10 + 1))
    a("s_mul_i32 s38, s37, 10")
    a("s_sub_u32 s38, s34, s38")
    a("s_lshl_b32 s39, s37, 5")
    a("v_add_u32 v5, s39, v2")
    a("s_movk_i32 s32, 1280")
    a("v_mul_lo_u32 v6, v5, s32")
    a("v_lshl_add_u32 v6, v3, 3, v6")
    a("s_lshl_b32 s41, s38, 7")
    for kt in range(2):
        for s in range(2):
            for g in range(2):
                reg = 16 + (kt * 2 + s) * 4 + g * 2
                a("buffer_load_dwordx2 %s, v6, s[28:31], s41 offen offset:%d" % (vr(reg, 2), kt * 64 + 32 * s + 16 * g))
    a("s_mul_i32 s43, s37, 40")
    a("s_lshl_b32 s44, s38, 2")
    a("s_add_u32 s43, s43, s44")
    a("s_lshl_b32 s43, s43, 10")
    a("s_add_u32 s43, s43, 0x%x" % OFF_X)
    srd_ws(a, 48, 22, 0, WS_SIZE)
    a("v_mov_b32 v9, 0x3f803f80")
    a("s_waitcnt vmcnt(0)")
    for f in range(4):
        a("buffer_store_dwordx4 %s, v4, s[48:51], s43 offen offset:%d" % (vr(16 + 4 * f, 4), f * 1024))
    for kt in range(2):
        sreg, qreg = 40 + 2 * kt, 41 + 2 * kt
        a("v_mov_b32 v%d, 0" % sreg)
        a("v_mov_b32 v%d, 0" % qreg)
        for i in range(8):
            r = 16 + kt * 8 + i
            a("v_dot2_f32_bf16 v%d, v%d, v9, v%d" % (sreg, r, sreg))
            a("v_dot2_f32_bf16 v%d, v%d, v%d, v%d" % (qreg, r, r, qreg))
    a("s_nop 4")
    for i in range(4):
        a("v_mov_b32 v%d, v%d" % (44 + i, 40 + i))
    a("s_nop 1")
    for i in range(4):
        a("v_permlane32_swap_b32 v%d, v%d" % (44 + i, 40 + i))
    a("s_nop 1")
    for i in range(4):
        a("v_add_f32 v%d, v%d, v%d" % (40 + i, 40 + i, 44 + i))
    a("v_lshlrev_b32 v7, 3, v5")
    a("s_lshl_b32 s44, s38, 15")
    a("s_add_u32 s44, s44, 0x%x" % OFF_ST)
    a("s_add_u32 s45, s44, 16384")
    a("buffer_store_dwordx2 v[40:41], v7, s[48:51], s44 offen")
    a("buffer_store_dwordx2 v[42:43], v7, s[48:51], s45 offen")
    a("s_branch L_prep_end")

    a.label("L_prep_cs")
    a("s_sub_u32 s34, s2, %d" % WG_CS0)
    a("s_cmp_ge_u32 s34, 150")
    a("s_cbranch_scc1 L_cs_u")
    a("s_cmp_ge_u32 s34, 96")
    a("s_cbranch_scc1 L_cs_g")
    srd_ptr(a, 28, 6, 640 * 1920 * 2)
    a("s_mov_b32 s32, 3840")
    a("s_lshr_b32 s39, s34, 5")
    a("s_and_b32 s40, s34, 31")
    a("s_mul_i32 s39, s39, 640")
    a("s_mul_i32 s40, s40, 20")
    a("s_add_u32 s39, s39, s40")
    a("v_add_u32 v5, s39, v2")
    a("v_lshlrev_b32 v5, 1, v5")
    a("v_mov_b32 v6, 0x40000000")
    a("v_cmp_gt_u32 vcc, 20, v2")
    a("s_nop 1")
    a("v_cndmask_b32 v5, v6, v5, vcc")
    a("s_lshl_b32 s35, s34, 7")
    a("s_add_u32 s35, s35, 0x%x" % OFF_CS)
    a("s_branch L_cs_w")
    for lab, ptr, j0, o in (("L_cs_g", 12, 96, 16384), ("L_cs_u", 14, 150, 32768)):
        a.label(lab)
        srd_ptr(a, 28, ptr, 640 * 1728 * 2)
        a("s_mov_b32 s32, 3456")
        a("s_sub_u32 s34, s34, %d" % j0)
        a("s_lshl_b32 s39, s34, 5")
        a("v_add_u32 v5, s39, v2")
        a("v_lshlrev_b32 v5, 1, v5")
        a("s_lshl_b32 s35, s34, 7")
        a("s_add_u32 s35, s35, 0x%x" % (OFF_CS + o))
        a("s_branch L_cs_w")
    a.label("L_cs_w")
    a("s_mul_i32 s41, s24, 160")
    a("v_mul_u32_u24 v6, 80, v3")
    a("v_add_u32 v6, s41, v6")
    a("v_mul_lo_u32 v6, v6, s32")
    a("v_add_u32 v6, v6, v5")
    for i in range(80):
        a("s_mul_i32 s42, s32, %d" % i)
        a("buffer_load_ushort v%d, v6, s[28:31], s42 offen" % (16 + i))
    a("v_mov_b32 v8, 0")
    a("v_mov_b32 v9, 0")
    a("s_waitcnt vmcnt(0)")
    for i in range(80):
        a("v_lshlrev_b32 v%d, 16, v%d" % (16 + i, 16 + i))
        a("v_add_f32 v%d, v%d, v%d" % (8 + i % 2, 8 + i % 2, 16 + i))
    a("v_add_f32 v8, v8, v9")
    a("s_lshl_b32 s41, s24, 8")
    a("v_lshl_add_u32 v10, v0, 2, s41")
    a("ds_write_b32 v10, v8")
    a("s_waitcnt lgkmcnt(0)")
    a("s_barrier")
    a("s_cmp_lg_u32 s24, 0")
    a("s_cbranch_scc1 L_prep_end")
    a("v_lshlrev_b32 v10, 2, v2")
    for i in range(8):
        a("ds_read_b32 v%d, v10 offset:%d" % (16 + i, i * 128))
    a("s_waitcnt lgkmcnt(0)")
    for i in range(1, 8):
        a("v_add_f32 v16, v16, v%d" % (16 + i))
    srd_ws(a, 48, 22, 0, WS_SIZE)
    a("buffer_store_dword v16, v10, s[48:51], s35 offen")
    a.label("L_prep_end")
    kernel_end(a, name, 128)
    return "; @launch kernel=%s grid=(%d,1,1) block=(256,1,1) lds=1024" % (name, K0_WGS)


DEPTH = 8


def kloop(a, KS, srdA, srdB, vA, vB, sOff, stage, acc, swapped, tail=None):
    def loads(ks):
        slot = stage + (ks % DEPTH) * 16
        if ks % 4 == 0:
            a("s_mov_b32 s%d, 0x%x" % (sOff, (ks // 4) * 4096))
        imm = (ks % 4) * 1024
        for i in range(2):
            a("buffer_load_dwordx4 %s, v%d, %s, s%d offen offset:%d" % (vr(slot + 4 * i, 4), vA[i], sr(srdA, 4), sOff, imm))
            a.vissue(("k", ks))
        for j in range(2):
            a("buffer_load_dwordx4 %s, v%d, %s, s%d offen offset:%d" % (vr(slot + 8 + 4 * j, 4), vB[j], sr(srdB, 4), sOff, imm))
            a.vissue(("k", ks))

    for ks in range(min(DEPTH, KS)):
        loads(ks)
    ntail = 0
    for ks in range(KS):
        a.vwait(("k", ks))
        slot = stage + (ks % DEPTH) * 16
        for i in range(2):
            for j in range(2):
                d = acc + (i * 2 + j) * 16
                A = vr(slot + 4 * i, 4)
                B = vr(slot + 8 + 4 * j, 4)
                c = "0" if ks == 0 else vr(d, 16)
                if swapped:
                    a("v_mfma_f32_32x32x16_bf16 %s, %s, %s, %s" % (vr(d, 16), B, A, c))
                else:
                    a("v_mfma_f32_32x32x16_bf16 %s, %s, %s, %s" % (vr(d, 16), A, B, c))
        if ks + DEPTH < KS:
            loads(ks + DEPTH)
        elif tail is not None:
            tail(ntail, slot)
            ntail += 1


def stats_tail(a, srdST, vTok, srdCS, vCS, sTmp, ncs_tiles, cs_swapped, plan):
    def tail(i, slot):
        if i < 5:
            for q in range(8):
                idx = i * 8 + q
                rt, ct = idx // 20, idx % 20
                a("s_mov_b32 s%d, 0x%x" % (sTmp, ct * 16384 + rt * 256))
                a("buffer_load_dwordx2 %s, v%d, %s, s%d offen" % (vr(slot + 2 * q, 2), vTok, sr(srdST, 4), sTmp))
                a.vissue(("st", idx))
                plan[("st", rt, ct)] = slot + 2 * q
        elif i - 5 < ncs_tiles:
            j = i - 5
            if cs_swapped:
                for g in range(4):
                    a("buffer_load_dwordx4 %s, v%d, %s, 0 offen offset:%d" % (vr(slot + 4 * g, 4), vCS[j], sr(srdCS, 4), g * 32))
                    a.vissue(("cs", j))
                plan[("cs", j)] = slot
            else:
                a("buffer_load_dword v%d, v%d, %s, 0 offen" % (slot, vCS[j], sr(srdCS, 4)))
                a.vissue(("cs", j))
                plan[("cs", j)] = slot
    return tail


def stats_finalize(a, plan, out, t):
    for rt in range(2):
        s0 = plan[("st", rt, 0)]
        for ct in range(1, 20):
            r = plan[("st", rt, ct)]
            a("v_add_f32 v%d, v%d, v%d" % (s0, s0, r))
            a("v_add_f32 v%d, v%d, v%d" % (s0 + 1, s0 + 1, r + 1))
        mean, var = t, t + 1
        a("v_mul_f32 v%d, %s, v%d" % (mean, fhex(1.0 / 640), s0))
        a("v_mul_f32 v%d, %s, v%d" % (var, fhex(1.0 / 640), s0 + 1))
        a("v_fma_f32 v%d, -v%d, v%d, v%d" % (var, mean, mean, var))
        a("v_max_f32 v%d, 0, v%d" % (var, var))
        bf16r(a, mean, mean)
        bf16r(a, var, var)
        a("v_add_f32 v%d, %s, v%d" % (var, fhex(1e-5), var))
        bf16r(a, var, var)
        a("v_sqrt_f32 v%d, v%d" % (var, var))
        a("s_nop 0")
        bf16r(a, var, var)
        a("v_rcp_f32 v%d, v%d" % (out + 2 * rt, var))
        a("s_nop 0")
        a("v_mul_f32 v%d, v%d, v%d" % (out + 2 * rt + 1, mean, out + 2 * rt))
        a("v_sub_f32 v%d, 0, v%d" % (out + 2 * rt + 1, out + 2 * rt + 1))


def gen_qkv(a):
    name = "qkv_kernel"
    NW = 32 * 48
    kernel_begin(a, name)
    a("s_load_dwordx2 s[4:5], s[0:1], 72")
    a("s_cmp_ge_u32 s2, %d" % NW)
    a("s_cbranch_scc1 L_qkv_end")
    a("s_and_b32 s6, s2, 7")
    a("s_lshr_b32 s7, s2, 3")
    a("s_mul_hi_u32 s8, s7, 0x%x" % ((1 << 32) // 6 + 1))
    a("s_mul_i32 s9, s8, 6")
    a("s_sub_u32 s9, s7, s9")
    a("s_mul_i32 s6, s6, 6")
    a("s_add_u32 s9, s9, s6")
    a("v_and_b32 v1, 31, v0")
    a("v_lshrrev_b32 v2, 5, v0")
    a("v_lshlrev_b32 v3, 4, v0")
    a("s_waitcnt lgkmcnt(0)")
    srd_ws(a, 12, 4, OFF_X, 64 * 40 * 1024)
    srd_ws(a, 16, 4, OFF_WQKV, 96 * 40 * 1024)
    srd_ws(a, 20, 4, OFF_ST, 20 * 2048 * 8)
    srd_ws(a, 24, 4, OFF_CS, 3072 * 4)
    srd_ws(a, 28, 4, OFF_Q, 12 * MB)
    a("s_mul_i32 s32, s8, %d" % (2 * 40 * 1024))
    a("v_add_u32 v4, s32, v3")
    a("v_add_u32 v5, 0x%x, v4" % (40 * 1024))
    a("s_mul_i32 s33, s9, %d" % (2 * 40 * 1024))
    a("v_add_u32 v6, s33, v3")
    a("v_add_u32 v7, 0x%x, v6" % (40 * 1024))
    a("s_lshl_b32 s34, s8, 9")
    a("v_lshl_add_u32 v8, v1, 3, s34")
    a("s_lshr_b32 s35, s9, 4")
    a("s_and_b32 s36, s9, 15")
    a("s_lshl_b32 s37, s35, 22")
    a("s_lshl_b32 s38, s36, 18")
    a("s_add_u32 s37, s37, s38")
    a("s_lshl_b32 s38, s8, 12")
    a("s_add_u32 s37, s37, s38")
    a("v_add_u32 v11, s37, v3")
    a("s_cmp_eq_u32 s35, 2")
    a("s_cbranch_scc1 L_qkv_v")
    a("s_lshl_b32 s39, s9, 8")
    a("v_lshl_add_u32 v9, v2, 4, s39")
    a("v_add_u32 v10, 128, v9")
    plan = {}
    kloop(a, 40, 12, 16, [4, 5], [6, 7], 40, 128, 64, True,
          stats_tail(a, 20, 8, 24, [9, 10], 41, 2, True, plan))
    a.vwait_all()
    stats_finalize(a, plan, 12, 16)
    a("s_cmp_lg_u32 s35, 0")
    a("s_cbranch_scc1 L_qkv_noscale")
    for r in range(4):
        a("v_mul_f32 v%d, %s, v%d" % (12 + r, fhex(QSCALE), 12 + r))
    a.label("L_qkv_noscale")
    a("s_nop 7")
    for i in range(2):
        for j in range(2):
            d = 64 + (i * 2 + j) * 16
            cs = plan[("cs", j)]
            for r in range(16):
                a("v_mul_f32 v%d, v%d, v%d" % (d + r, d + r, 12 + 2 * i))
                a("v_fma_f32 v%d, v%d, v%d, v%d" % (d + r, 13 + 2 * i, cs + r, d + r))
            for r in range(8):
                a("v_cvt_pk_bf16_f32 v%d, v%d, v%d" % (20 + r, d + 2 * r, d + 2 * r + 1))
            a("s_mov_b32 s42, 0x%x" % (j * 64 * 2048 + i * 2048))
            a("buffer_store_dwordx4 v[20:23], v11, s[28:31], s42 offen")
            a("buffer_store_dwordx4 v[24:27], v11, s[28:31], s42 offen offset:1024")
            a("s_nop 1")
    a("s_branch L_qkv_end")
    a.label("L_qkv_v")
    a("s_lshl_b32 s39, s9, 8")
    a("v_lshl_add_u32 v9, v1, 2, s39")
    a("v_add_u32 v10, 128, v9")
    plan = {}
    a.vm = []
    kloop(a, 40, 12, 16, [4, 5], [6, 7], 40, 128, 64, False,
          stats_tail(a, 20, 8, 24, [9, 10], 41, 2, False, plan))
    a.vwait_all()
    stats_finalize(a, plan, 12, 16)
    a("v_lshlrev_b32 v16, 2, v1")
    a("ds_write_b32 v16, v12 offset:0")
    a("ds_write_b32 v16, v14 offset:128")
    a("ds_write_b32 v16, v13 offset:256")
    a("ds_write_b32 v16, v15 offset:384")
    a("v_lshlrev_b32 v17, 4, v2")
    a("s_waitcnt lgkmcnt(0)")
    csr = [plan[("cs", 0)], plan[("cs", 1)]]
    a("v_mov_b32 v18, v%d" % csr[0])
    a("v_mov_b32 v19, v%d" % csr[1])
    for i in range(2):
        for g in range(4):
            a("ds_read_b128 %s, v17 offset:%d" % (vr(128 + i * 16 + 4 * g, 4), i * 128 + g * 32))
            a("ds_read_b128 %s, v17 offset:%d" % (vr(160 + i * 16 + 4 * g, 4), 256 + i * 128 + g * 32))
    a("v_cmp_eq_u32 s[44:45], 24, v1")
    a("v_cmp_eq_u32 s[46:47], 20, v1")
    a("s_or_b64 s[44:45], s[44:45], s[46:47]")
    a("v_mov_b32 v29, 0x3f803f80")
    a("s_waitcnt lgkmcnt(0)")
    for i in range(2):
        for j in range(2):
            d = 64 + (i * 2 + j) * 16
            for r in range(16):
                a("v_mul_f32 v%d, v%d, v%d" % (d + r, d + r, 128 + i * 16 + r))
                a("v_fma_f32 v%d, v%d, v%d, v%d" % (d + r, 160 + i * 16 + r, 18 + j, d + r))
            for r in range(8):
                a("v_cvt_pk_bf16_f32 v%d, v%d, v%d" % (20 + r, d + 2 * r, d + 2 * r + 1))
            for r in range(8):
                a("v_cndmask_b32 v%d, v%d, v29, s[44:45]" % (20 + r, 20 + r))
            a("s_mov_b32 s42, 0x%x" % (j * 64 * 2048 + i * 2048))
            a("buffer_store_dwordx4 v[20:23], v11, s[28:31], s42 offen")
            a("buffer_store_dwordx4 v[24:27], v11, s[28:31], s42 offen offset:1024")
            a("s_nop 1")
    a.label("L_qkv_end")
    kernel_end(a, name, 256)
    return "; @launch kernel=%s grid=(%d,1,1) block=(64,1,1) lds=512" % (name, NW)


def gen_attn(a):
    name = "attn_kernel"
    kernel_begin(a, name)
    a("s_load_dwordx2 s[4:5], s[0:1], 72")
    a("s_cmp_ge_u32 s2, 256")
    a("s_cbranch_scc1 L_att_end")
    a("s_and_b32 s6, s2, 31")
    a("s_lshr_b32 s7, s2, 5")
    a("v_lshrrev_b32 v1, 6, v0")
    a("s_nop 0")
    a("v_readfirstlane_b32 s8, v1")
    a("v_and_b32 v2, 63, v0")
    a("v_lshlrev_b32 v3, 4, v2")
    a("v_lshlrev_b32 v4, 4, v0")
    a("s_waitcnt lgkmcnt(0)")
    srd_ws(a, 12, 4, OFF_Q, 4 * MB)
    srd_ws(a, 16, 4, OFF_K, 4 * MB)
    srd_ws(a, 20, 4, OFF_V, 4 * MB)
    srd_ws(a, 24, 4, OFF_O, 4 * MB)
    a("s_lshl_b32 s9, s6, 17")
    a("s_lshl_b32 s10, s7, 3")
    a("s_add_u32 s10, s10, s8")
    a("s_lshl_b32 s11, s10, 11")
    a("s_add_u32 s11, s11, s9")
    QF = 8
    NEGM = 16
    SA = 32
    SB = 48
    PK = 64
    OA = 72
    KF = 88
    VF = 104
    STG = 120
    MX = 136
    a("buffer_load_dwordx4 %s, v3, s[12:15], s11 offen" % vr(QF, 4))
    a("buffer_load_dwordx4 %s, v3, s[12:15], s11 offen offset:1024" % vr(QF + 4, 4))
    a("s_mov_b32 s28, s9")
    a("s_add_u32 s29, s28, 8192")
    a("buffer_load_dwordx4 %s, v4, s[16:19], s28 offen" % vr(STG, 4))
    a("buffer_load_dwordx4 %s, v4, s[16:19], s29 offen" % vr(STG + 4, 4))
    a("v_mov_b32 v%d, 0xff800000" % MX)
    a("v_mov_b32 v%d, 0xff800000" % (MX + 1))
    a("v_mov_b32 v5, v4")
    a("v_mov_b32 v6, v3")
    a("s_waitcnt vmcnt(0)")
    a("ds_write_b128 v5, %s offset:0" % vr(STG, 4))
    a("ds_write_b128 v5, %s offset:8192" % vr(STG + 4, 4))
    a("s_waitcnt lgkmcnt(0)")
    a("s_barrier")
    a("s_mov_b32 s30, 0")
    a.label("L_att_p1")
    a("s_add_u32 s28, s28, 16384")
    a("s_cmp_eq_u32 s30, 7")
    a("s_cselect_b32 s28, s9, s28")
    a("s_add_u32 s29, s28, 8192")
    a("buffer_load_dwordx4 %s, v4, s[16:19], s28 offen" % vr(STG, 4))
    a("buffer_load_dwordx4 %s, v4, s[16:19], s29 offen" % vr(STG + 4, 4))
    a("buffer_load_dwordx4 %s, v4, s[20:23], s28 offen" % vr(STG + 8, 4))
    a("buffer_load_dwordx4 %s, v4, s[20:23], s29 offen" % vr(STG + 12, 4))
    a("v_xor_b32 v5, 0x8000, v5")
    def kread(t):
        kf = KF + (t % 2) * 8
        a("ds_read_b128 %s, v6 offset:%d" % (vr(kf, 4), t * 2048))
        a("ds_read_b128 %s, v6 offset:%d" % (vr(kf + 4, 4), t * 2048 + 1024))

    def smfma(t, c0):
        kf = KF + (t % 2) * 8
        S = SA if t % 2 == 0 else SB
        a("v_mfma_f32_32x32x16_bf16 %s, %s, %s, %s" % (vr(S, 16), vr(kf, 4), vr(QF, 4), c0))
        a("v_mfma_f32_32x32x16_bf16 %s, %s, %s, %s" % (vr(S, 16), vr(kf + 4, 4), vr(QF + 4, 4), vr(S, 16)))

    def maxops(t):
        S = SA if t % 2 == 0 else SB
        for r in range(8):
            m = MX + r % 2
            a("v_max3_f32 v%d, v%d, v%d, v%d" % (m, S + 2 * r, S + 2 * r + 1, m))

    kread(0)
    kread(1)
    a("s_waitcnt lgkmcnt(2)")
    smfma(0, "0")
    for t in range(8):
        if t + 1 < 8:
            a("s_waitcnt lgkmcnt(0)")
            smfma(t + 1, "0")
            if t + 2 < 8:
                kread(t + 2)
        if t == 7 or t == 0:
            a("s_nop 15")
        maxops(t)
    a("s_waitcnt vmcnt(0)")
    a("ds_write_b128 v5, %s offset:0" % vr(STG, 4))
    a("ds_write_b128 v5, %s offset:8192" % vr(STG + 4, 4))
    a("ds_write_b128 v5, %s offset:16384" % vr(STG + 8, 4))
    a("ds_write_b128 v5, %s offset:24576" % vr(STG + 12, 4))
    a("v_xor_b32 v6, 0x8000, v6")
    a("s_waitcnt lgkmcnt(0)")
    a("s_barrier")
    a("s_add_u32 s30, s30, 1")
    a("s_cmp_lt_u32 s30, 8")
    a("s_cbranch_scc1 L_att_p1")
    a("v_max_f32 v%d, v%d, v%d" % (MX, MX, MX + 1))
    a("v_mov_b32 v%d, v%d" % (MX + 1, MX))
    a("s_nop 1")
    a("v_permlane32_swap_b32 v%d, v%d" % (MX, MX + 1))
    a("s_nop 1")
    a("v_max_f32 v%d, v%d, v%d" % (MX, MX, MX + 1))
    for r in range(16):
        a("v_sub_f32 v%d, 0, v%d" % (NEGM + r, MX))
        a("v_mov_b32 v%d, 0" % (OA + r))
    a("s_mov_b32 s30, 0")
    a("s_mov_b32 s28, s9")
    a.label("L_att_p2")
    a("s_add_u32 s28, s28, 16384")
    a("s_add_u32 s29, s28, 8192")
    a("s_cmp_eq_u32 s30, 7")
    a("s_cbranch_scc1 L_att_noload")
    a("buffer_load_dwordx4 %s, v4, s[16:19], s28 offen" % vr(STG, 4))
    a("buffer_load_dwordx4 %s, v4, s[16:19], s29 offen" % vr(STG + 4, 4))
    a("buffer_load_dwordx4 %s, v4, s[20:23], s28 offen" % vr(STG + 8, 4))
    a("buffer_load_dwordx4 %s, v4, s[20:23], s29 offen" % vr(STG + 12, 4))
    a.label("L_att_noload")
    a("v_xor_b32 v5, 0x8000, v5")

    def vread(t):
        vf = VF + (t % 2) * 8
        a("ds_read_b128 %s, v6 offset:%d" % (vr(vf, 4), 16384 + t * 2048))
        a("ds_read_b128 %s, v6 offset:%d" % (vr(vf + 4, 4), 16384 + t * 2048 + 1024))

    def softmax(t):
        S = SA if t % 2 == 0 else SB
        for r in range(16):
            a("v_exp_f32 v%d, v%d" % (S + r, S + r))
        a("s_nop 0")
        for r in range(8):
            a("v_cvt_pk_bf16_f32 v%d, v%d, v%d" % (PK + r, S + 2 * r, S + 2 * r + 1))

    def pv(t):
        vf = VF + (t % 2) * 8
        a("v_mfma_f32_32x32x16_bf16 %s, %s, %s, %s" % (vr(OA, 16), vr(vf, 4), vr(PK, 4), vr(OA, 16)))
        a("v_mfma_f32_32x32x16_bf16 %s, %s, %s, %s" % (vr(OA, 16), vr(vf + 4, 4), vr(PK + 4, 4), vr(OA, 16)))

    kread(0)
    kread(1)
    vread(0)
    a("s_waitcnt lgkmcnt(4)")
    smfma(0, vr(NEGM, 16))
    for t in range(8):
        if t + 1 < 8:
            a("s_waitcnt lgkmcnt(2)")
            smfma(t + 1, vr(NEGM, 16))
            if t + 2 < 8:
                kread(t + 2)
        if t == 0:
            a("s_nop 15")
        if t == 7:
            a("s_nop 15")
        softmax(t)
        if t + 2 < 8:
            a("s_waitcnt lgkmcnt(2)")
        else:
            a("s_waitcnt lgkmcnt(0)")
        a("s_nop 1")
        pv(t)
        if t + 1 < 8:
            vread(t + 1)
    a("s_cmp_eq_u32 s30, 7")
    a("s_cbranch_scc1 L_att_fin")
    a("s_waitcnt vmcnt(0)")
    a("ds_write_b128 v5, %s offset:0" % vr(STG, 4))
    a("ds_write_b128 v5, %s offset:8192" % vr(STG + 4, 4))
    a("ds_write_b128 v5, %s offset:16384" % vr(STG + 8, 4))
    a("ds_write_b128 v5, %s offset:24576" % vr(STG + 12, 4))
    a("v_xor_b32 v6, 0x8000, v6")
    a("s_waitcnt lgkmcnt(0)")
    a("s_barrier")
    a("s_add_u32 s30, s30, 1")
    a("s_branch L_att_p2")
    a.label("L_att_fin")
    a("s_nop 15")
    a("s_nop 3")
    a("v_cmp_gt_u32 vcc, 32, v2")
    a("s_nop 1")
    a("v_cndmask_b32 v%d, v%d, v%d, vcc" % (MX, OA + 8, OA + 12))
    a("v_rcp_f32 v%d, v%d" % (MX, MX))
    a("s_nop 0")
    for r in range(16):
        a("v_mul_f32 v%d, v%d, v%d" % (OA + r, OA + r, MX))
    for r in range(8):
        a("v_cvt_pk_bf16_f32 v%d, v%d, v%d" % (PK + r, OA + 2 * r, OA + 2 * r + 1))
    a("s_lshl_b32 s31, s10, 16")
    a("s_lshl_b32 s32, s6, 11")
    a("s_add_u32 s31, s31, s32")
    a("buffer_store_dwordx4 %s, v3, s[24:27], s31 offen" % vr(PK, 4))
    a("buffer_store_dwordx4 %s, v3, s[24:27], s31 offen offset:1024" % vr(PK + 4, 4))
    a.label("L_att_end")
    kernel_end(a, name, 144)
    return "; @launch kernel=%s grid=(256,1,1) block=(512,1,1) lds=65536" % name


def gen_proj(a, name, offA, KSA, offW, final):
    KW = KSA // 4
    NWG = 32 * 10
    kernel_begin(a, name)
    a("s_load_dwordx2 s[4:5], s[0:1], 72")
    if final:
        a("s_load_dwordx2 s[44:45], s[0:1], 56")
    a("s_cmp_ge_u32 s2, %d" % NWG)
    a("s_cbranch_scc1 L_%s_end" % name)
    a("s_mul_hi_u32 s8, s2, 0x%x" % ((1 << 32) // 10 + 1))
    a("s_mul_i32 s9, s8, 10")
    a("s_sub_u32 s9, s2, s9")
    a("v_lshrrev_b32 v1, 6, v0")
    a("v_and_b32 v0, 63, v0")
    a("s_nop 0")
    a("v_readfirstlane_b32 s10, v1")
    a("v_and_b32 v1, 31, v0")
    a("v_lshrrev_b32 v2, 5, v0")
    a("v_lshlrev_b32 v3, 4, v0")
    a("s_waitcnt lgkmcnt(0)")
    srd_ws(a, 12, 4, offA, 64 * KSA * 1024)
    srd_ws(a, 16, 4, offW, 20 * KSA * 1024)
    srd_ws(a, 20, 4, OFF_ST, 20 * 2048 * 8)
    srd_ws(a, 24, 4, OFF_X, 64 * 40 * 1024)
    if final:
        srd_ptr(a, 28, 44, 2048 * 640 * 2)
    a("s_mul_i32 s32, s8, %d" % (2 * KSA * 1024))
    a("s_mul_i32 s34, s10, %d" % (KW * 1024))
    a("s_add_u32 s32, s32, s34")
    a("v_add_u32 v4, s32, v3")
    a("v_add_u32 v5, 0x%x, v4" % (KSA * 1024))
    a("s_mul_i32 s33, s9, %d" % (2 * KSA * 1024))
    a("s_add_u32 s33, s33, s34")
    a("v_add_u32 v6, s33, v3")
    a("v_add_u32 v7, 0x%x, v6" % (KSA * 1024))
    a("s_lshr_b32 s35, s10, 1")
    a("s_and_b32 s36, s10, 1")
    a("s_lshl_b32 s37, s8, 1")
    a("s_add_u32 s37, s37, s35")
    a("s_lshl_b32 s38, s9, 1")
    a("s_add_u32 s38, s38, s36")
    a("s_mul_i32 s39, s37, 40")
    a("s_lshl_b32 s41, s38, 1")
    a("s_add_u32 s39, s39, s41")
    a("s_lshl_b32 s39, s39, 10")
    XR = 8
    a("buffer_load_dwordx4 %s, v3, s[24:27], s39 offen" % vr(XR, 4))
    a("buffer_load_dwordx4 %s, v3, s[24:27], s39 offen offset:1024" % vr(XR + 4, 4))
    a.vissue("x")
    a.vissue("x")
    kloop(a, KW, 12, 16, [4, 5], [6, 7], 40, 128, 64, True)
    a.vwait_all()
    a("s_nop 15")
    a("s_lshl_b32 s41, s10, 14")
    a("v_add_u32 v16, s41, v3")
    for q in range(16):
        a("ds_write_b128 v16, %s offset:%d" % (vr(64 + 4 * q, 4), q * 1024))
    a("s_waitcnt lgkmcnt(0)")
    a("s_barrier")
    a("s_lshl_b32 s41, s10, 12")
    a("v_add_u32 v16, s41, v3")
    for src in range(4):
        for q in range(4):
            a("ds_read_b128 %s, v16 offset:%d" % (vr(128 + src * 16 + 4 * q, 4), src * 16384 + q * 1024))
    a("s_waitcnt lgkmcnt(0)")
    for r in range(16):
        a("v_add_f32 v%d, v%d, v%d" % (128 + r, 128 + r, 144 + r))
        a("v_add_f32 v%d, v%d, v%d" % (160 + r, 160 + r, 176 + r))
    for r in range(16):
        a("v_add_f32 v%d, v%d, v%d" % (128 + r, 128 + r, 160 + r))
    for r in range(8):
        a("v_cvt_pk_bf16_f32 v%d, v%d, v%d" % (144 + r, 128 + 2 * r, 128 + 2 * r + 1))
    for r in range(8):
        a("v_lshlrev_b32 v%d, 16, v%d" % (128 + 2 * r, 144 + r))
        a("v_and_b32 v%d, 0xffff0000, v%d" % (128 + 2 * r + 1, 144 + r))
        a("v_lshlrev_b32 v%d, 16, v%d" % (160 + 2 * r, XR + r))
        a("v_and_b32 v%d, 0xffff0000, v%d" % (160 + 2 * r + 1, XR + r))
    for r in range(16):
        a("v_add_f32 v%d, v%d, v%d" % (128 + r, 128 + r, 160 + r))
    for r in range(8):
        a("v_cvt_pk_bf16_f32 v%d, v%d, v%d" % (144 + r, 128 + 2 * r, 128 + 2 * r + 1))
    if final:
        a("s_lshl_b32 s41, s37, 5")
        a("v_add_u32 v17, s41, v1")
        a("s_movk_i32 s42, 1280")
        a("v_mul_lo_u32 v17, v17, s42")
        a("v_lshl_add_u32 v17, v2, 3, v17")
        a("s_lshl_b32 s42, s38, 6")
        for g in range(4):
            a("buffer_store_dwordx2 %s, v17, s[28:31], s42 offen offset:%d" % (vr(144 + 2 * g, 2), g * 16))
    else:
        a("buffer_store_dwordx4 v[144:147], v3, s[24:27], s39 offen")
        a("buffer_store_dwordx4 v[148:151], v3, s[24:27], s39 offen offset:1024")
        a("v_mov_b32 v20, 0x3f803f80")
        a("v_mov_b32 v22, 0")
        a("v_mov_b32 v23, 0")
        for r in range(8):
            a("v_dot2_f32_bf16 v22, v%d, v20, v22" % (144 + r))
            a("v_dot2_f32_bf16 v23, v%d, v%d, v23" % (144 + r, 144 + r))
        a("s_nop 4")
        a("v_mov_b32 v24, v22")
        a("v_mov_b32 v25, v23")
        a("s_nop 1")
        a("v_permlane32_swap_b32 v24, v22")
        a("v_permlane32_swap_b32 v25, v23")
        a("s_nop 1")
        a("v_add_f32 v22, v22, v24")
        a("v_add_f32 v23, v23, v25")
        a("s_lshl_b32 s41, s37, 8")
        a("v_lshl_add_u32 v17, v1, 3, s41")
        a("s_lshl_b32 s42, s38, 14")
        a("buffer_store_dwordx2 v[22:23], v17, s[20:23], s42 offen")
    a.label("L_%s_end" % name)
    kernel_end(a, name, 256)
    return "; @launch kernel=%s grid=(%d,1,1) block=(256,1,1) lds=65536" % (name, NWG)


def gen_gu(a):
    name = "gu_kernel"
    NW = 32 * 54
    kernel_begin(a, name)
    a("s_load_dwordx2 s[4:5], s[0:1], 72")
    a("s_cmp_ge_u32 s2, %d" % NW)
    a("s_cbranch_scc1 L_gu_end")
    a("s_mul_hi_u32 s8, s2, 0x%x" % ((1 << 32) // 54 + 1))
    a("s_mul_i32 s9, s8, 54")
    a("s_sub_u32 s9, s2, s9")
    a("v_and_b32 v1, 31, v0")
    a("v_lshrrev_b32 v2, 5, v0")
    a("v_lshlrev_b32 v3, 4, v0")
    a("s_waitcnt lgkmcnt(0)")
    srd_ws(a, 12, 4, OFF_X, 64 * 40 * 1024)
    srd_ws(a, 16, 4, OFF_WG, 6 * MB)
    srd_ws(a, 20, 4, OFF_ST, 20 * 2048 * 8)
    srd_ws(a, 24, 4, OFF_CS + 16384, 32768)
    srd_ws(a, 28, 4, OFF_H, 64 * 108 * 1024)
    a("s_mul_i32 s32, s8, %d" % (2 * 40 * 1024))
    a("v_add_u32 v4, s32, v3")
    a("v_add_u32 v5, 0x%x, v4" % (40 * 1024))
    a("s_mul_i32 s33, s9, %d" % (40 * 1024))
    a("v_add_u32 v6, s33, v3")
    a("v_add_u32 v7, 0x%x, v6" % (3 * MB))
    a("s_lshl_b32 s34, s8, 9")
    a("v_lshl_add_u32 v8, v1, 3, s34")
    a("s_lshl_b32 s39, s9, 7")
    a("v_lshl_add_u32 v9, v2, 4, s39")
    a("v_add_u32 v10, 0x4000, v9")
    a("s_mul_i32 s37, s8, %d" % (2 * 108 * 1024))
    a("s_lshl_b32 s38, s9, 11")
    a("s_add_u32 s37, s37, s38")
    a("v_add_u32 v11, s37, v3")
    plan = {}
    kloop(a, 40, 12, 16, [4, 5], [6, 7], 40, 128, 64, True,
          stats_tail(a, 20, 8, 24, [9, 10], 41, 2, True, plan))
    a.vwait_all()
    stats_finalize(a, plan, 12, 16)
    a("s_nop 7")
    K1 = -2.0 * LOG2E * 0.7978845608028654
    K2 = K1 * 0.044715
    a("s_mov_b32 s44, %s" % fhex(K1))
    a("s_mov_b32 s45, %s" % fhex(K2))
    for i in range(2):
        dg = 64 + (i * 2 + 0) * 16
        du = 64 + (i * 2 + 1) * 16
        csg, csu = plan[("cs", 0)], plan[("cs", 1)]
        for r in range(16):
            a("v_mul_f32 v%d, v%d, v%d" % (dg + r, dg + r, 12 + 2 * i))
            a("v_fma_f32 v%d, v%d, v%d, v%d" % (dg + r, 13 + 2 * i, csg + r, dg + r))
            a("v_mul_f32 v%d, v%d, v%d" % (du + r, du + r, 12 + 2 * i))
            a("v_fma_f32 v%d, v%d, v%d, v%d" % (du + r, 13 + 2 * i, csu + r, du + r))
        for r in range(8):
            a("v_cvt_pk_bf16_f32 v%d, v%d, v%d" % (20 + r, dg + 2 * r, dg + 2 * r + 1))
            a("v_cvt_pk_bf16_f32 v%d, v%d, v%d" % (28 + r, du + 2 * r, du + 2 * r + 1))
        for r in range(8):
            a("v_lshlrev_b32 v%d, 16, v%d" % (dg + 2 * r, 20 + r))
            a("v_and_b32 v%d, 0xffff0000, v%d" % (dg + 2 * r + 1, 20 + r))
            a("v_lshlrev_b32 v%d, 16, v%d" % (du + 2 * r, 28 + r))
            a("v_and_b32 v%d, 0xffff0000, v%d" % (du + 2 * r + 1, 28 + r))
        T = 36
        for r in range(16):
            a("v_mul_f32 v%d, v%d, v%d" % (T + r, dg + r, dg + r))
        a("v_mov_b32 v52, s44")
        for r in range(16):
            a("v_fma_f32 v%d, v%d, s45, v52" % (T + r, T + r))
        for r in range(16):
            a("v_mul_f32 v%d, v%d, v%d" % (T + r, T + r, dg + r))
        for r in range(16):
            a("v_exp_f32 v%d, v%d" % (T + r, T + r))
        a("s_nop 0")
        for r in range(16):
            a("v_add_f32 v%d, 1.0, v%d" % (T + r, T + r))
        for r in range(16):
            a("v_rcp_f32 v%d, v%d" % (T + r, T + r))
        a("s_nop 0")
        for r in range(16):
            a("v_mul_f32 v%d, v%d, v%d" % (T + r, T + r, dg + r))
        for r in range(8):
            a("v_cvt_pk_bf16_f32 v%d, v%d, v%d" % (20 + r, T + 2 * r, T + 2 * r + 1))
        for r in range(8):
            a("v_lshlrev_b32 v%d, 16, v%d" % (T + 2 * r, 20 + r))
            a("v_and_b32 v%d, 0xffff0000, v%d" % (T + 2 * r + 1, 20 + r))
        for r in range(16):
            a("v_mul_f32 v%d, v%d, v%d" % (T + r, T + r, du + r))
        for r in range(8):
            a("v_cvt_pk_bf16_f32 v%d, v%d, v%d" % (20 + r, T + 2 * r, T + 2 * r + 1))
        a("s_mov_b32 s42, 0x%x" % (i * 108 * 1024))
        a("buffer_store_dwordx4 v[20:23], v11, s[28:31], s42 offen")
        a("buffer_store_dwordx4 v[24:27], v11, s[28:31], s42 offen offset:1024")
        a("s_nop 1")
    a.label("L_gu_end")
    kernel_end(a, name, 256)
    return "; @launch kernel=%s grid=(%d,1,1) block=(64,1,1) lds=0" % (name, NW)


def main():
    a = Asm()
    l_prep = gen_prep(a)
    l_qkv = gen_qkv(a)
    l_att = gen_attn(a)
    l_wo = gen_proj(a, "wo_kernel", OFF_O, 64, OFF_WO, False)
    l_gu = gen_gu(a)
    l_dn = gen_proj(a, "down_kernel", OFF_H, 108, OFF_WD, False)
    l_dnf = gen_proj(a, "downf_kernel", OFF_H, 108, OFF_WD, True)
    launches = [l_prep, l_qkv, l_att, l_wo, l_gu, l_dn, l_qkv, l_att, l_wo, l_gu, l_dnf]
    out = []
    out += launches
    out.append('.amdgcn_target "amdgcn-amd-amdhsa--gfx950"')
    out.append(".text")
    out.append(a.text())
    out.append('.section .rodata,"a"')
    out.append(".p2align 6")
    for d in DESCS:
        out.append(".p2align 6" + d)
    path = sys.argv[1] if len(sys.argv) > 1 else "cdna_kernels/%s.s" % NAME
    open(path, "w").write("\n".join(out) + "\n")


if __name__ == "__main__":
    main()
```

```python
import struct
import sys

NAME = "interleave_layers__mha_block__glu_gated_geglu__prompt"
MB = 1 << 20
OFF_WQKV = 0
OFF_WO = 4 * MB
OFF_WG = 6 * MB
OFF_WU = 9 * MB
OFF_WD = 12 * MB
OFF_CS = 15 * MB
OFF_X = 16 * MB
OFF_ST = 19 * MB
OFF_Q = 20 * MB
OFF_K = 24 * MB
OFF_V = 28 * MB
OFF_O = 32 * MB
OFF_H = 36 * MB
WS_SIZE = 268435456

LOG2E = 1.4426950408889634
QSCALE = LOG2E / (20.0 ** 0.5)


def f32bits(x):
    return struct.unpack("<I", struct.pack("<f", x))[0]


def fhex(x):
    return "0x%08x" % f32bits(x)


class Asm:
    def __init__(self):
        self.lines = []
        self.vm = []
        self.lab = 0

    def __call__(self, s):
        self.lines.append("    " + s)

    def label(self, name):
        self.lines.append(name + ":")

    def newlabel(self, p="L"):
        self.lab += 1
        return "%s_%d" % (p, self.lab)

    def raw(self, s):
        self.lines.append(s)

    def vissue(self, tag):
        self.vm.append(tag)

    def vwait(self, tag):
        if tag not in self.vm:
            return
        idx = len(self.vm) - 1 - self.vm[::-1].index(tag)
        n = len(self.vm) - 1 - idx
        if n <= 63:
            self("s_waitcnt vmcnt(%d)" % n)
        self.vm = self.vm[idx + 1:]

    def vwait_all(self):
        self("s_waitcnt vmcnt(0)")
        self.vm = []

    def text(self):
        return "\n".join(self.lines)


def vr(b, n):
    return "v[%d:%d]" % (b, b + n - 1)


def sr(b, n):
    return "s[%d:%d]" % (b, b + n - 1)


def kernel_begin(a, name):
    a.raw(".globl %s" % name)
    a.raw(".p2align 8")
    a.raw(".type %s,@function" % name)
    a.label(name)


DESCS = []


def kernel_end(a, name, vgpr, sgpr=102, agpr=0):
    a("s_endpgm")
    acc = (vgpr + 3) // 4 * 4
    if agpr:
        vgpr = acc + agpr
    DESCS.append("""
.amdhsa_kernel %s
  .amdhsa_next_free_vgpr %d
  .amdhsa_next_free_sgpr %d
  .amdhsa_accum_offset %d
  .amdhsa_group_segment_fixed_size 0
  .amdhsa_kernarg_size 80
  .amdhsa_user_sgpr_count 2
  .amdhsa_user_sgpr_kernarg_segment_ptr 1
  .amdhsa_system_sgpr_workgroup_id_x 1
.end_amdhsa_kernel""" % (name, vgpr, sgpr, acc))


def srd_ws(a, d, wsreg, off, size):
    a("s_add_u32 s%d, s%d, 0x%x" % (d, wsreg, off))
    a("s_addc_u32 s%d, s%d, 0" % (d + 1, wsreg + 1))
    a("s_and_b32 s%d, s%d, 0xffff" % (d + 1, d + 1))
    a("s_mov_b32 s%d, 0x%x" % (d + 2, size))
    a("s_mov_b32 s%d, 0x00020000" % (d + 3))


def srd_ptr(a, d, preg, size):
    a("s_mov_b32 s%d, s%d" % (d, preg))
    a("s_and_b32 s%d, s%d, 0xffff" % (d + 1, preg + 1))
    a("s_mov_b32 s%d, 0x%x" % (d + 2, size))
    a("s_mov_b32 s%d, 0x00020000" % (d + 3))


import os
STAMP = int(os.environ.get("STAMP", "0"))


def stamp(a, idx, sreg=90, real=False):
    if not STAMP:
        return
    a("s_memrealtime s[88:89]" if real else "s_memtime s[88:89]")
    a("s_waitcnt lgkmcnt(0)")
    a("s_mov_b32 s%d, s88" % (sreg + idx))


def stamp_flush(a, n, wgsel, sreg=90):
    if not STAMP:
        return
    lab = a.newlabel("L_st")
    a("s_cmp_lg_u32 s2, %d" % wgsel)
    a("s_cbranch_scc1 %s" % lab)
    a("s_load_dwordx2 s[80:81], s[0:1], 64")
    a("s_waitcnt lgkmcnt(0)")
    a("s_and_b32 s81, s81, 0xffff")
    a("s_mov_b32 s82, 256")
    a("s_mov_b32 s83, 0x00020000")
    a("v_mov_b32 v250, 0")
    for i in range(n):
        a("v_mov_b32 v251, s%d" % (sreg + i))
        a("buffer_store_dword v251, v250, s[80:83], 0 offen offset:%d" % (4 * i))
        a("s_nop 1")
    a.label(lab)


def bf16r(a, dst, src):
    a("v_cvt_pk_bf16_f32 v%d, v%d, v%d" % (dst, src, src))
    a("v_lshlrev_b32 v%d, 16, v%d" % (dst, dst))


WJ = [
    ("q", 6, 640 * 1920 * 2, 3840, 10, 15, OFF_WQKV, 40, 60),
    ("o", 8, 640 * 640 * 2, 1280, 10, 5, OFF_WO, 40, 20),
    ("g", 12, 640 * 1728 * 2, 3456, 10, 14, OFF_WG, 40, 54),
    ("u", 14, 640 * 1728 * 2, 3456, 10, 14, OFF_WU, 40, 54),
    ("d", 16, 1728 * 640 * 2, 1280, 27, 5, OFF_WD, 108, 20),
]
CJ = [("q", 6, 640 * 1920 * 2, 3840, 60, 0, 1920), ("g", 12, 640 * 1728 * 2, 3456, 54, 16384, 1728),
      ("u", 14, 640 * 1728 * 2, 3456, 54, 32768, 1728)]
N_CS = sum(c[4] for c in CJ)
N_W = sum(w[4] * w[5] for w in WJ)
WG_W0 = N_CS
WG_X0 = WG_W0 + N_W
WG_P0 = WG_X0 + 160
K0_WGS = WG_P0
RS = 272


def gen_prep(a):
    name = "prep_kernel"
    kernel_begin(a, name)
    a("s_load_dwordx16 s[4:19], s[0:1], 0")
    a("s_load_dwordx4 s[20:23], s[0:1], 64")
    a("v_lshrrev_b32 v1, 6, v0")
    a("v_mov_b32 v40, v0")
    a("v_and_b32 v0, 63, v0")
    a("s_nop 0")
    a("v_readfirstlane_b32 s24, v1")
    a("v_and_b32 v2, 31, v0")
    a("v_lshrrev_b32 v3, 5, v0")
    a("v_lshlrev_b32 v4, 4, v0")
    a("v_and_b32 v41, 15, v40")
    a("v_lshrrev_b32 v42, 4, v40")
    a("s_waitcnt lgkmcnt(0)")
    srd_ws(a, 48, 22, 0, WS_SIZE)
    a("s_cmp_ge_u32 s2, %d" % K0_WGS)
    a("s_cbranch_scc1 L_prep_end")
    a("s_cmp_ge_u32 s2, %d" % WG_P0)
    a("s_cbranch_scc1 L_prep_pad")
    a("s_cmp_ge_u32 s2, %d" % WG_X0)
    a("s_cbranch_scc1 L_prep_x")
    a("s_cmp_lt_u32 s2, %d" % WG_W0)
    a("s_cbranch_scc1 L_prep_cs")
    j0 = WG_W0
    for (lab, ptr, size, ld, nkb, nnb, dst, KS, nct) in WJ:
        nxt = j0 + nkb * nnb
        a("s_cmp_ge_u32 s2, %d" % nxt)
        a("s_cbranch_scc1 L_prep_n%s" % lab)
        srd_ptr(a, 28, ptr, size)
        a("s_mov_b32 s32, %d" % ld)
        a("s_sub_u32 s34, s2, %d" % j0)
        a("s_mul_hi_u32 s37, s34, 0x%x" % ((1 << 32) // nnb + 1))
        a("s_mul_i32 s38, s37, %d" % nnb)
        a("s_sub_u32 s38, s34, s38")
        a("s_mov_b32 s35, 0x%x" % dst)
        a("s_mov_b32 s36, %d" % KS)
        a("s_mov_b32 s33, %d" % nct)
        a("s_branch L_prep_w")
        a.label("L_prep_n%s" % lab)
        j0 = nxt
    a.label("L_prep_w")
    a("s_lshl_b32 s41, s37, 6")
    a("v_add_u32 v5, s41, v42")
    a("v_mul_lo_u32 v5, v5, s32")
    a("s_lshl_b32 s41, s38, 8")
    a("v_lshl_add_u32 v6, v41, 4, s41")
    a("v_add_u32 v5, v5, v6")
    for i in range(4):
        a("s_mul_i32 s42, s32, %d" % (16 * i))
        a("buffer_load_dwordx4 %s, v5, s[28:31], s42 offen" % vr(16 + 4 * i, 4))
    a("v_mul_u32_u24 v6, %d, v42" % RS)
    a("v_lshl_add_u32 v6, v41, 4, v6")
    a("v_bfe_u32 v7, v0, 2, 2")
    a("v_lshl_add_u32 v7, v3, 2, v7")
    a("v_mul_u32_u24 v7, %d, v7" % RS)
    a("v_and_b32 v8, 3, v0")
    a("v_lshl_add_u32 v7, v8, 3, v7")
    a("v_bfe_u32 v8, v0, 4, 1")
    a("v_lshl_add_u32 v7, v8, 5, v7")
    a("s_lshl_b32 s41, s24, 6")
    a("v_add_u32 v7, s41, v7")
    a("s_waitcnt vmcnt(0)")
    for i in range(4):
        a("ds_write_b128 v6, %s offset:%d" % (vr(16 + 4 * i, 4), 16 * i * RS))
    a("s_waitcnt lgkmcnt(0)")
    a("s_barrier")
    for kt in range(2):
        for sx in range(2):
            for g in range(2):
                a("ds_read_b64_tr_b16 %s, v7 offset:%d" % (vr(16 + (kt * 2 + sx) * 4 + 2 * g, 2), (32 * kt + 16 * sx + 8 * g) * RS))
    a("s_lshl_b32 s43, s38, 2")
    a("s_add_u32 s43, s43, s24")
    a("s_cmp_ge_u32 s43, s33")
    a("s_cbranch_scc1 L_prep_end")
    a("s_mul_i32 s43, s43, s36")
    a("s_lshl_b32 s44, s37, 2")
    a("s_add_u32 s43, s43, s44")
    a("s_lshl_b32 s43, s43, 10")
    a("s_add_u32 s43, s43, s35")
    a("s_waitcnt lgkmcnt(0)")
    for f in range(4):
        a("buffer_store_dwordx4 %s, v4, s[48:51], s43 offen offset:%d" % (vr(16 + 4 * f, 4), f * 1024))
    a("s_branch L_prep_end")

    a.label("L_prep_pad")
    a("s_sub_u32 s34, s2, %d" % WG_P0)
    a("s_lshl_b32 s34, s34, 2")
    a("s_add_u32 s34, s34, s24")
    a("s_lshl_b32 s34, s34, 11")
    for i in range(4):
        a("v_mov_b32 v%d, 0" % (16 + i))
    a("v_cmp_eq_u32 vcc, 20, v2")
    a("v_cmp_eq_u32 s[44:45], 24, v2")
    a("s_or_b64 vcc, vcc, s[44:45]")
    a("v_mov_b32 v24, 0x3f803f80")
    a("s_nop 1")
    for i in range(4):
        a("v_cndmask_b32 v%d, 0, v24, vcc" % (20 + i))
    a("s_add_u32 s35, s34, 0x%x" % OFF_Q)
    a("buffer_store_dwordx4 v[16:19], v4, s[48:51], s35 offen offset:1024")
    a("s_add_u32 s35, s34, 0x%x" % OFF_K)
    a("buffer_store_dwordx4 v[16:19], v4, s[48:51], s35 offen offset:1024")
    a("s_add_u32 s35, s34, 0x%x" % OFF_V)
    a("buffer_store_dwordx4 v[20:23], v4, s[48:51], s35 offen")
    a("buffer_store_dwordx4 v[20:23], v4, s[48:51], s35 offen offset:1024")
    a("s_branch L_prep_end")

    a.label("L_prep_x")
    srd_ptr(a, 28, 4, 2048 * 640 * 2)
    a("s_sub_u32 s34, s2, %d" % WG_X0)
    a("s_lshl_b32 s34, s34, 2")
    a("s_add_u32 s34, s34, s24")
    a("s_mul_hi_u32 s37, s34, 0x%x" % ((1 << 32) // 10 + 1))
    a("s_mul_i32 s38, s37, 10")
    a("s_sub_u32 s38, s34, s38")
    a("s_lshl_b32 s39, s37, 5")
    a("v_add_u32 v5, s39, v2")
    a("s_movk_i32 s32, 1280")
    a("v_mul_lo_u32 v6, v5, s32")
    a("v_lshl_add_u32 v6, v3, 3, v6")
    a("s_lshl_b32 s41, s38, 7")
    for kt in range(2):
        for sx in range(2):
            for g in range(2):
                reg = 16 + (kt * 2 + sx) * 4 + g * 2
                a("buffer_load_dwordx2 %s, v6, s[28:31], s41 offen offset:%d" % (vr(reg, 2), kt * 64 + 32 * sx + 16 * g))
    a("s_mul_i32 s43, s37, 40")
    a("s_lshl_b32 s44, s38, 2")
    a("s_add_u32 s43, s43, s44")
    a("s_lshl_b32 s43, s43, 10")
    a("s_add_u32 s43, s43, 0x%x" % OFF_X)
    a("v_mov_b32 v9, 0x3f803f80")
    a("s_waitcnt vmcnt(0)")
    for f in range(4):
        a("buffer_store_dwordx4 %s, v4, s[48:51], s43 offen offset:%d" % (vr(16 + 4 * f, 4), f * 1024))
    for kt in range(2):
        sreg, qreg = 44 + 2 * kt, 45 + 2 * kt
        a("v_mov_b32 v%d, 0" % sreg)
        a("v_mov_b32 v%d, 0" % qreg)
        for i in range(8):
            r = 16 + kt * 8 + i
            a("v_dot2_f32_bf16 v%d, v%d, v9, v%d" % (sreg, r, sreg))
            a("v_dot2_f32_bf16 v%d, v%d, v%d, v%d" % (qreg, r, r, qreg))
    a("s_nop 4")
    for i in range(4):
        a("v_mov_b32 v%d, v%d" % (48 + i, 44 + i))
    a("s_nop 1")
    for i in range(4):
        a("v_permlane32_swap_b32 v%d, v%d" % (48 + i, 44 + i))
    a("s_nop 1")
    for i in range(4):
        a("v_add_f32 v%d, v%d, v%d" % (44 + i, 44 + i, 48 + i))
    a("v_lshlrev_b32 v7, 3, v5")
    a("s_lshl_b32 s44, s38, 15")
    a("s_add_u32 s44, s44, 0x%x" % OFF_ST)
    a("s_add_u32 s45, s44, 16384")
    a("buffer_store_dwordx2 v[44:45], v7, s[48:51], s44 offen")
    a("buffer_store_dwordx2 v[46:47], v7, s[48:51], s45 offen")
    a("s_branch L_prep_end")

    a.label("L_prep_cs")
    j0 = 0
    for (lab, ptr, size, ld, nnb, o, ncol) in CJ:
        nxt = j0 + nnb
        a("s_cmp_ge_u32 s2, %d" % nxt)
        a("s_cbranch_scc1 L_cs_n%s" % lab)
        srd_ptr(a, 28, ptr, size)
        a("s_mov_b32 s32, %d" % ld)
        a("s_sub_u32 s38, s2, %d" % j0)
        srd_ws(a, 52, 22, OFF_CS + o, ncol * 4)
        a("s_branch L_cs_w")
        a.label("L_cs_n%s" % lab)
        j0 = nxt
    a.label("L_cs_w")
    a("v_and_b32 v41, 3, v40")
    a("v_lshrrev_b32 v42, 2, v40")
    a("v_mul_lo_u32 v5, v42, s32")
    a("s_lshl_b32 s41, s38, 6")
    a("v_lshl_add_u32 v6, v41, 4, s41")
    a("v_add_u32 v5, v5, v6")
    for i in range(10):
        a("s_mul_i32 s42, s32, %d" % (64 * i))
        a("buffer_load_dwordx4 %s, v5, s[28:31], s42 offen" % vr(48 + 4 * i, 4))
    for e in range(8):
        a("v_mov_b32 v%d, 0" % (16 + e))
    for i in range(10):
        a("s_waitcnt vmcnt(%d)" % (9 - i))
        for d in range(4):
            r = 48 + 4 * i + d
            a("v_lshlrev_b32 v24, 16, v%d" % r)
            a("v_and_b32 v25, 0xffff0000, v%d" % r)
            a("v_add_f32 v%d, v%d, v24" % (16 + 2 * d, 16 + 2 * d))
            a("v_add_f32 v%d, v%d, v25" % (17 + 2 * d, 17 + 2 * d))
    a("v_lshlrev_b32 v6, 7, v42")
    a("v_lshl_add_u32 v6, v41, 5, v6")
    a("ds_write_b128 v6, v[16:19]")
    a("ds_write_b128 v6, v[20:23] offset:16")
    a("s_waitcnt lgkmcnt(0)")
    a("s_barrier")
    a("s_cmp_ge_u32 s24, 1")
    a("s_cbranch_scc1 L_prep_end")
    a("v_lshlrev_b32 v6, 2, v2")
    a("v_lshl_add_u32 v6, v3, 12, v6")
    for i in range(32):
        a("ds_read_b32 v%d, v6 offset:%d" % (64 + i, i * 128))
    a("s_waitcnt lgkmcnt(0)")
    for i in range(1, 32):
        a("v_add_f32 v64, v64, v%d" % (64 + i))
    a("v_mov_b32 v65, v64")
    a("s_nop 1")
    a("v_permlane32_swap_b32 v65, v64")
    a("s_nop 1")
    a("v_add_f32 v64, v64, v65")
    a("v_lshlrev_b32 v6, 2, v2")
    a("s_lshl_b32 s41, s38, 7")
    a("buffer_store_dword v64, v6, s[52:55], s41 offen")
    a.label("L_prep_end")
    kernel_end(a, name, 128)
    return "; @launch kernel=%s grid=(%d,1,1) block=(256,1,1) lds=%d" % (name, K0_WGS, 64 * RS)


DEPTH = int(__import__("os").environ.get("DEPTH", "8"))


def kloop(a, KS, srdA, srdB, vA, vB, sOff, stage, acc, swapped, tail=None, stampf=None):
    def loads(ks):
        slot = stage + (ks % DEPTH) * 16
        if ks % 4 == 0:
            a("s_mov_b32 s%d, 0x%x" % (sOff, (ks // 4) * 4096))
        imm = (ks % 4) * 1024
        for i in range(2):
            a("buffer_load_dwordx4 %s, v%d, %s, s%d offen offset:%d" % (vr(slot + 4 * i, 4), vA[i], sr(srdA, 4), sOff, imm))
            a.vissue(("k", ks))
        for j in range(2):
            a("buffer_load_dwordx4 %s, v%d, %s, s%d offen offset:%d" % (vr(slot + 8 + 4 * j, 4), vB[j], sr(srdB, 4), sOff, imm))
            a.vissue(("k", ks))

    for ks in range(min(DEPTH, KS)):
        loads(ks)
    ntail = 0
    for ks in range(KS):
        a.vwait(("k", ks))
        if stampf and ks in (0, 8, 16):
            stampf(a, 1 + ks // 8)
        slot = stage + (ks % DEPTH) * 16
        for i in range(2):
            for j in range(2):
                d = acc + (i * 2 + j) * 16
                A = vr(slot + 4 * i, 4)
                B = vr(slot + 8 + 4 * j, 4)
                c = "0" if ks == 0 else vr(d, 16)
                if swapped:
                    a("v_mfma_f32_32x32x16_bf16 %s, %s, %s, %s" % (vr(d, 16), B, A, c))
                else:
                    a("v_mfma_f32_32x32x16_bf16 %s, %s, %s, %s" % (vr(d, 16), A, B, c))
        if ks + DEPTH < KS:
            loads(ks + DEPTH)
        elif tail is not None:
            tail(ntail, slot)
            ntail += 1


def stats_tail(a, srdST, vTok, srdCS, vCS, sTmp, ncs_tiles, cs_swapped, plan):
    def tail(i, slot):
        if i < 5:
            for q in range(8):
                idx = i * 8 + q
                rt, ct = idx // 20, idx % 20
                a("s_mov_b32 s%d, 0x%x" % (sTmp, ct * 16384 + rt * 256))
                a("buffer_load_dwordx2 %s, v%d, %s, s%d offen" % (vr(slot + 2 * q, 2), vTok, sr(srdST, 4), sTmp))
                a.vissue(("st", idx))
                plan[("st", rt, ct)] = slot + 2 * q
        elif i - 5 < ncs_tiles:
            j = i - 5
            if cs_swapped:
                for g in range(4):
                    a("buffer_load_dwordx4 %s, v%d, %s, 0 offen offset:%d" % (vr(slot + 4 * g, 4), vCS[j], sr(srdCS, 4), g * 32))
                    a.vissue(("cs", j))
                plan[("cs", j)] = slot
            else:
                a("buffer_load_dword v%d, v%d, %s, 0 offen" % (slot, vCS[j], sr(srdCS, 4)))
                a.vissue(("cs", j))
                plan[("cs", j)] = slot
    return tail


def stats_finalize(a, plan, out, t):
    for rt in range(2):
        s0 = plan[("st", rt, 0)]
        for ct in range(1, 20):
            r = plan[("st", rt, ct)]
            a("v_add_f32 v%d, v%d, v%d" % (s0, s0, r))
            a("v_add_f32 v%d, v%d, v%d" % (s0 + 1, s0 + 1, r + 1))
        mean, var = t, t + 1
        a("v_mul_f32 v%d, %s, v%d" % (mean, fhex(1.0 / 640), s0))
        a("v_mul_f32 v%d, %s, v%d" % (var, fhex(1.0 / 640), s0 + 1))
        a("v_fma_f32 v%d, -v%d, v%d, v%d" % (var, mean, mean, var))
        a("v_max_f32 v%d, 0, v%d" % (var, var))
        bf16r(a, mean, mean)
        bf16r(a, var, var)
        a("v_add_f32 v%d, %s, v%d" % (var, fhex(1e-5), var))
        bf16r(a, var, var)
        a("v_sqrt_f32 v%d, v%d" % (var, var))
        a("s_nop 0")
        bf16r(a, var, var)
        a("v_rcp_f32 v%d, v%d" % (out + 2 * rt, var))
        a("s_nop 0")
        a("v_mul_f32 v%d, v%d, v%d" % (out + 2 * rt + 1, mean, out + 2 * rt))
        a("v_sub_f32 v%d, 0, v%d" % (out + 2 * rt + 1, out + 2 * rt + 1))


def ar(b, n):
    return "a[%d:%d]" % (b, b + n - 1)


def adma1(a, NRT, srdA, sAoff, sWave, vLane16, g, i):
    per = 10 * NRT // 4
    f0 = 4 * (g * per + i)
    a("s_add_u32 s42, s%d, 0x%x" % (sWave, f0 * 1024))
    a("s_mov_b32 m0, s42")
    a("s_add_u32 s43, s%d, 0x%x" % (sAoff, (f0 // NRT) * 1024))
    a("buffer_load_dwordx4 v%d, %s, s43 offen lds" % (vLane16, sr(srdA, 4)))
    a.vissue(("A", g))


def astat_prologue(a, NRT, TN, DB, srdA, srdB, vB, sAoff, sWave, vLane16, active=True):
    per = 10 * NRT // 4
    for i in range(per):
        adma1(a, NRT, srdA, sAoff, sWave, vLane16, 0, i)
        if active and i < DB:
            bload(a, i, TN, DB, srdB, vB)
    if active:
        for ks in range(per, DB):
            bload(a, ks, TN, DB, srdB, vB)
    a.adma_args = (NRT, srdA, sAoff, sWave, vLane16)


def astat_adma_in_loop(a, ks):
    NRT = a.adma_args[0]
    per = 10 * NRT // 4
    g = 1 + ks // 5
    if g > 3:
        return
    n = (per + 4) // 5
    for i in range((ks % 5) * n, min(per, (ks % 5 + 1) * n)):
        adma1(a, *a.adma_args, g, i)


def astat_side(a, srdST, vTok, SBASE, srdCS, vCS, CSB, cs_swapped, TN, STOUT, active=True):
    def cb(ks):
        if ks in (7, 9, 11, 13, 15):
            b = (ks - 7) // 2
            a.vwait(("st", b))
            sl = SBASE + (b % 3) * 8
            for q in range(4):
                if b == 0 and q == 0:
                    a("v_mov_b32 v%d, v%d" % (SBASE + 24, sl))
                    a("v_mov_b32 v%d, v%d" % (SBASE + 25, sl + 1))
                else:
                    a("v_add_f32 v%d, v%d, v%d" % (SBASE + 24, SBASE + 24, sl + 2 * q))
                    a("v_add_f32 v%d, v%d, v%d" % (SBASE + 25, SBASE + 25, sl + 2 * q + 1))
        if ks in (1, 3, 5, 7, 9):
            b = (ks - 1) // 2
            sl = SBASE + (b % 3) * 8
            for q in range(4):
                a("s_mov_b32 s41, 0x%x" % ((b * 4 + q) * 16384))
                a("buffer_load_dwordx2 %s, v%d, %s, s41 offen" % (vr(sl + 2 * q, 2), vTok, sr(srdST, 4)))
                a.vissue(("st", b))
        if ks == 6 and active:
            for j in range(TN):
                if cs_swapped[j]:
                    for g in range(4):
                        a("buffer_load_dwordx4 %s, v%d, %s, 0 offen offset:%d" % (vr(CSB + 16 * j + 4 * g, 4), vCS[j][0], sr(srdCS, 4), g * 32))
                        a.vissue("cs")
                else:
                    a("buffer_load_dword v%d, v%d, %s, 0 offen" % (CSB + 16 * j, vCS[j][1], sr(srdCS, 4)))
                    a.vissue("cs")
        if ks == 17:
            astat_stats(a, SBASE, STOUT)
    return cb


def bload(a, ks, TN, DB, srdB, vB):
    slot = (ks % DB) * TN * 4
    if ks % 4 == 0:
        a("s_mov_b32 s40, 0x%x" % ((ks // 4) * 4096))
    for j in range(TN):
        a("buffer_load_dwordx4 %s, v%d, %s, s40 offen offset:%d" % (ar(slot + 4 * j, 4), vB[j], sr(srdB, 4), (ks % 4) * 1024))
        a.vissue(("B", ks))


def astat_stats(a, SBASE, out):
    mean, var = SBASE + 2, SBASE + 3
    a("v_mul_f32 v%d, %s, v%d" % (mean, fhex(1.0 / 640), SBASE + 24))
    a("v_mul_f32 v%d, %s, v%d" % (var, fhex(1.0 / 640), SBASE + 25))
    a("v_fma_f32 v%d, -v%d, v%d, v%d" % (var, mean, mean, var))
    a("v_max_f32 v%d, 0, v%d" % (var, var))
    bf16r(a, mean, mean)
    bf16r(a, var, var)
    a("v_add_f32 v%d, %s, v%d" % (var, fhex(1e-5), var))
    bf16r(a, var, var)
    a("v_sqrt_f32 v%d, v%d" % (var, var))
    a("s_nop 0")
    bf16r(a, var, var)
    a("v_rcp_f32 v%d, v%d" % (out, var))
    a("s_nop 0")
    a("v_mul_f32 v%d, v%d, v%d" % (out + 1, mean, out))
    a("v_sub_f32 v%d, 0, v%d" % (out + 1, out + 1))


def astat_loop(a, NRT, TN, DB, srdB, vB, vLane16, AF, acc, swapped, vStW, STOUT, side, active=True):
    KS = 40

    def aread(ks):
        base = AF + (ks % 3) * NRT * 4
        for i in range(NRT):
            off = (ks * NRT + i) * 1024
            if off < 65536:
                a("ds_read_b128 %s, v%d offset:%d" % (vr(base + 4 * i, 4), vLane16, off))
            elif off < 131072:
                a("ds_read_b128 %s, v%d offset:%d" % (vr(base + 4 * i, 4), vLane16 + 1, off - 65536))
            else:
                a("ds_read_b128 %s, v%d offset:%d" % (vr(base + 4 * i, 4), vLane16 + 2, off - 131072))

    for ks in range(KS):
        if ks % 10 == 0:
            a.vwait(("A", ks // 10))
            a("s_barrier")
            stamp(a, 2 + ks // 10)
            if ks == 20:
                a("ds_write_b32 v%d, v%d" % (vStW, STOUT))
                a("ds_write_b32 v%d, v%d offset:%d" % (vStW, STOUT + 1, NRT * 128))
                a("s_waitcnt lgkmcnt(0)")
            if active:
                aread(ks)
                aread(ks + 1)
        if not active:
            astat_adma_in_loop(a, ks)
            side(ks)
            continue
        if ks % 10 < 8:
            aread(ks + 2)
        nout = min(2, 9 - ks % 10) * NRT
        a("s_waitcnt lgkmcnt(%d)" % nout)
        a.vwait(("B", ks))
        base = AF + (ks % 3) * NRT * 4
        slot = (ks % DB) * TN * 4
        for j in range(TN):
            for i in range(NRT):
                d = acc + (i * TN + j) * 16
                A = vr(base + 4 * i, 4)
                B = ar(slot + 4 * j, 4)
                c = "0" if ks == 0 else vr(d, 16)
                if swapped[j]:
                    a("v_mfma_f32_32x32x16_bf16 %s, %s, %s, %s" % (vr(d, 16), B, A, c))
                else:
                    a("v_mfma_f32_32x32x16_bf16 %s, %s, %s, %s" % (vr(d, 16), A, B, c))
        astat_adma_in_loop(a, ks)
        if ks + DB < KS:
            bload(a, ks + DB, TN, DB, srdB, vB)
        side(ks)


def gen_qkv(a):
    name = "qkv_kernel"
    NWG = 240
    DB = 16
    kernel_begin(a, name)
    a("s_load_dwordx2 s[4:5], s[0:1], 72")
    a("s_cmp_ge_u32 s2, %d" % NWG)
    a("s_cbranch_scc1 L_qkv_end")
    stamp(a, 0)
    a("s_and_b32 s6, s2, 7")
    a("s_lshr_b32 s7, s2, 3")
    a("s_mul_hi_u32 s8, s7, 0x%x" % ((1 << 32) // 15 + 1))
    a("s_mul_i32 s9, s8, 15")
    a("s_sub_u32 s9, s7, s9")
    a("s_lshl_b32 s6, s6, 1")
    a("s_add_u32 s8, s8, s6")
    a("v_lshrrev_b32 v1, 6, v0")
    a("v_and_b32 v0, 63, v0")
    a("s_nop 0")
    a("v_readfirstlane_b32 s10, v1")
    a("v_and_b32 v1, 31, v0")
    a("v_lshrrev_b32 v2, 5, v0")
    a("v_lshlrev_b32 v3, 4, v0")
    a("v_add_u32 v4, 0x10000, v3")
    a("v_add_u32 v5, 0x20000, v3")
    a("s_waitcnt lgkmcnt(0)")
    srd_ws(a, 12, 4, OFF_X, 64 * 40 * 1024)
    srd_ws(a, 16, 4, OFF_WQKV, 60 * 40 * 1024)
    srd_ws(a, 20, 4, OFF_ST, 20 * 2048 * 8)
    srd_ws(a, 24, 4, OFF_CS, 1920 * 4)
    srd_ws(a, 28, 4, OFF_Q, 12 * MB)
    a("s_lshl_b32 s11, s9, 2")
    a("s_add_u32 s11, s11, s10")
    a("s_lshl_b32 s33, s8, 2")
    a("s_add_u32 s33, s33, s10")
    a("s_mul_i32 s34, s33, %d" % (40 * 1024))
    a("s_lshl_b32 s35, s10, 10")
    a("s_mul_i32 s36, s11, %d" % (40 * 1024))
    a("v_add_u32 v6, s36, v3")
    a("s_lshl_b32 s36, s33, 8")
    a("v_lshl_add_u32 v9, v1, 3, s36")
    a("s_lshl_b32 s36, s11, 7")
    a("v_lshl_add_u32 v10, v2, 4, s36")
    a("v_lshl_add_u32 v11, v1, 2, s36")
    a("s_lshl_b32 s36, s10, 7")
    a("v_lshl_add_u32 v16, v1, 2, s36")
    a("s_mul_hi_u32 s44, s11, 0x%x" % ((1 << 32) // 20 + 1))
    a("s_mul_i32 s45, s44, 20")
    a("s_sub_u32 s45, s11, s45")
    a("s_lshl_b32 s45, s45, 5")
    a("s_lshl_b32 s46, s44, 22")
    a("s_mul_i32 s47, s8, %d" % (4 * 1280))
    a("s_add_u32 s46, s46, s47")
    STOUT, AF, CSB, SBASE, ACC = 18, 20, 68, 100, 128
    a("s_cmp_eq_u32 s44, 2")
    a("s_cbranch_scc1 L_qkv_v")
    for path, sw in (("qk", [True]), ("v", [False])):
        a.label("L_qkv_" + path)
        a.vm = []
        astat_prologue(a, 4, 1, DB, 12, 16, [6], 34, 35, 3)
        stamp(a, 1)
        astat_loop(a, 4, 1, DB, 16, [6], 3, AF, ACC, sw, 16, STOUT,
                   astat_side(a, 20, 9, SBASE, 24, [(10, 11)], CSB, sw, 1, STOUT))
        a.vwait_all()
        stamp(a, 6)
        if sw[0]:
            a("v_lshlrev_b32 v17, 2, v1")
            for i in range(4):
                a("ds_read_b32 v%d, v17 offset:%d" % (100 + i, i * 128))
                a("ds_read_b32 v%d, v17 offset:%d" % (104 + i, 512 + i * 128))
            a("s_cmp_eq_u32 s44, 0")
            a("s_cselect_b32 s48, %s, 1.0" % fhex(QSCALE))
            a("v_lshlrev_b32 v24, 4, v1")
            for g in range(4):
                a("s_add_u32 s49, s45, %d" % (8 * g))
                a("v_lshl_add_u32 v25, v2, 2, s49")
                a("v_mul_u32_u24 v26, 3277, v25")
                a("v_lshrrev_b32 v26, 16, v26")
                a("v_mul_u32_u24 v27, 20, v26")
                a("v_sub_u32 v27, v25, v27")
                a("v_lshrrev_b32 v27, 2, v27")
                a("v_mul_u32_u24 v28, 0x14000, v26")
                a("v_and_b32 v29, 1, v27")
                a("v_lshl_add_u32 v30, v29, 9, v24")
                a("v_bfe_u32 v29, v27, 1, 1")
                a("v_lshl_add_u32 v30, v29, 3, v30")
                a("v_lshrrev_b32 v29, 1, v24")
                a("v_add_u32 v29, 1024, v29")
                a("v_cmp_eq_u32 vcc, 4, v27")
                a("s_nop 1")
                a("v_cndmask_b32 v30, v30, v29, vcc")
                a("v_add_u32 v%d, v28, v30" % (20 + g))
            a("s_waitcnt lgkmcnt(0)")
            for i in range(4):
                d = ACC + i * 16
                a("v_mul_f32 v56, s48, v%d" % (100 + i))
                a("v_mul_f32 v57, s48, v%d" % (104 + i))
                for r in range(16):
                    a("v_mul_f32 v%d, v%d, v56" % (d + r, d + r))
                    a("v_fma_f32 v%d, v57, v%d, v%d" % (d + r, CSB + r, d + r))
                for r in range(8):
                    a("v_cvt_pk_bf16_f32 v%d, v%d, v%d" % (d + r, d + 2 * r, d + 2 * r + 1))
                a("s_add_u32 s49, s46, %d" % (i * 1280))
                for g in range(4):
                    a("buffer_store_dwordx2 %s, v%d, s[28:31], s49 offen" % (vr(d + 2 * g, 2), 20 + g))
        else:
            a("v_add_u32 v25, s45, v1")
            a("v_mul_u32_u24 v26, 3277, v25")
            a("v_lshrrev_b32 v26, 16, v26")
            a("v_mul_u32_u24 v27, 20, v26")
            a("v_sub_u32 v27, v25, v27")
            a("v_mul_u32_u24 v28, 0x14000, v26")
            a("v_lshl_add_u32 v28, v27, 4, v28")
            a("v_mul_u32_u24 v29, 320, v2")
            a("v_add_u32 v20, v28, v29")
            a("v_lshlrev_b32 v17, 4, v2")
            for i in range(4):
                for g in range(4):
                    a("ds_read_b128 %s, v17 offset:%d" % (vr(24 + 4 * g, 4), i * 128 + g * 32))
                    a("ds_read_b128 %s, v17 offset:%d" % (vr(40 + 4 * g, 4), 512 + i * 128 + g * 32))
                a("s_waitcnt lgkmcnt(0)")
                d = ACC + i * 16
                for r in range(16):
                    a("v_mul_f32 v%d, v%d, v%d" % (d + r, d + r, 24 + r))
                    a("v_fma_f32 v%d, v%d, v%d, v%d" % (d + r, 40 + r, CSB, d + r))
                for r in range(8):
                    a("v_cvt_pk_bf16_f32 v%d, v%d, v%d" % (d + r, d + 2 * r, d + 2 * r + 1))
                a("s_add_u32 s49, s46, %d" % (i * 1280))
                a("buffer_store_dwordx4 %s, v20, s[28:31], s49 offen" % vr(d, 4))
                a("buffer_store_dwordx4 %s, v20, s[28:31], s49 offen offset:640" % vr(d + 4, 4))
        stamp(a, 7)
        stamp_flush(a, 8, 41)
        a("s_branch L_qkv_end")
    a.label("L_qkv_end")
    kernel_end(a, name, 256, agpr=DB * 4)
    return "; @launch kernel=%s grid=(%d,1,1) block=(256,1,1) lds=163840" % (name, NWG)


def gen_attn(a):
    name = "attn_kernel"
    kernel_begin(a, name)
    a("s_load_dwordx2 s[4:5], s[0:1], 72")
    a("s_cmp_ge_u32 s2, 256")
    a("s_cbranch_scc1 L_att_end")
    stamp(a, 0)
    a("s_and_b32 s6, s2, 31")
    a("s_lshr_b32 s7, s2, 5")
    a("v_lshrrev_b32 v1, 6, v0")
    a("s_nop 0")
    a("v_readfirstlane_b32 s8, v1")
    a("v_and_b32 v2, 63, v0")
    a("v_lshlrev_b32 v3, 4, v2")
    a("s_waitcnt lgkmcnt(0)")
    srd_ws(a, 12, 4, OFF_Q, 4 * MB)
    srd_ws(a, 16, 4, OFF_K, 4 * MB)
    srd_ws(a, 20, 4, OFF_V, 4 * MB)
    srd_ws(a, 24, 4, OFF_O, 4 * MB)
    a("s_mul_i32 s9, s6, 81920")
    a("s_lshl_b32 s10, s7, 3")
    a("s_add_u32 s10, s10, s8")
    a("s_mul_i32 s11, s10, 1280")
    a("s_add_u32 s11, s11, s9")
    QF = 8
    NEGM = 16
    SS = 32
    PK = 80
    OA = 96
    KF = 112
    VF = 144
    MX = 160
    VBASE = 81920
    a("s_mov_b32 s40, -1")
    a("s_mov_b32 s41, 0")
    a("s_mov_b32 s42, 0x000fffff")
    a("s_mov_b32 s43, 0x000fffff")
    a.vm = []
    for r in range(4, 8):
        a("v_mov_b32 v%d, 0" % (QF + r))
    a("v_lshlrev_b32 v4, 3, v2")
    a("buffer_load_dwordx4 %s, v3, s[12:15], s11 offen" % vr(QF, 4))
    a("s_mov_b64 exec, s[40:41]")
    a("buffer_load_dwordx2 %s, v4, s[12:15], s11 offen offset:1024" % vr(QF + 4, 2))
    a("s_mov_b64 exec, -1")
    a.vissue("q")
    a.vissue("q")
    a("s_lshl_b32 s33, s8, 10")
    a("s_add_u32 s34, s9, s33")

    def dma(srd, goff, loff, tag):
        a("s_add_u32 s35, s33, 0x%x" % loff)
        a("s_mov_b32 m0, s35")
        a("s_add_u32 s36, s34, 0x%x" % goff)
        a("buffer_load_dwordx4 v3, %s, s36 offen lds" % sr(srd, 4))
        a.vissue(tag)

    for i in range(10):
        dma(16, i * 8192, i * 8192, ("K", i))
    for i in range(10):
        dma(20, i * 8192, VBASE + i * 8192, ("V", i))
    a("v_mov_b32 v%d, 0xff800000" % MX)
    a("v_mov_b32 v%d, 0xff800000" % (MX + 1))
    a("v_mov_b32 v6, v3")
    a("v_add_u32 v5, %d, v3" % (32 * 1280))
    a("v_add_u32 v1, %d, v4" % (32 * 1280))
    a("v_and_b32 v7, 31, v2")
    a("v_lshrrev_b32 v%d, 5, v2" % (MX + 2))
    a("v_mul_u32_u24 v%d, 320, v%d" % (MX + 2, MX + 2))
    a("v_lshl_add_u32 v%d, v7, 4, v%d" % (MX + 2, MX + 2))
    a("v_add_u32 v%d, %d, v%d" % (MX + 2, VBASE, MX + 2))
    a("v_add_u32 v%d, %d, v%d" % (MX + 3, 32 * 1280, MX + 2))
    for st in range(4):
        for r in range(4, 8):
            a("v_mov_b32 v%d, 0" % (KF + st * 8 + r))
    a("v_cmp_eq_u32 vcc, 20, v7")
    a("v_cmp_eq_u32 s[44:45], 24, v7")
    a("s_or_b64 vcc, vcc, s[44:45]")
    a("v_mov_b32 v7, 0x3f803f80")
    a("s_nop 1")
    for r in range(16):
        a("v_cndmask_b32 v%d, 0, v7, vcc" % (VF + r))

    def kread(t, nset):
        kf = KF + (t % nset) * 8
        a("ds_read_b128 %s, v%d offset:%d" % (vr(kf, 4), 6 if t < 32 else 5, (t % 32) * 1280))
        a("s_mov_b64 exec, s[40:41]")
        a("ds_read_b64 %s, v%d offset:%d" % (vr(kf + 4, 2), 4 if t < 32 else 1, (t % 32) * 1280 + 1024))
        a("s_mov_b64 exec, -1")

    def smfma(t, c0, nset, nS, half):
        kf = KF + (t % nset) * 8
        S = SS + (t % nS) * 16
        if half == 0:
            a("v_mfma_f32_32x32x16_bf16 %s, %s, %s, %s" % (vr(S, 16), vr(kf, 4), vr(QF, 4), c0))
        else:
            a("v_mfma_f32_32x32x16_bf16 %s, %s, %s, %s" % (vr(S, 16), vr(kf + 4, 4), vr(QF + 4, 4), vr(S, 16)))

    def maxops(t, lo, hi):
        S = SS + (t % 3) * 16
        for r in range(lo, hi):
            m = MX + r % 2
            a("v_max3_f32 v%d, v%d, v%d, v%d" % (m, S + 2 * r, S + 2 * r + 1, m))

    for (t0, t1, lastc) in ((0, 16, 2), (16, 64, 9)):
        a.vwait(("K", lastc))
        a("s_barrier")
        stamp(a, 1 if t0 == 0 else 2)
        for t in range(t0, t0 + 3):
            kread(t, 4)
        for u in range(t0, t1 + 2):
            if u < t1:
                nout = min(2, t1 - 1 - u) * 2
                a("s_waitcnt lgkmcnt(%d)" % nout)
                if u + 3 < t1:
                    kread(u + 3, 4)
                smfma(u, "0", 4, 3, 0)
            if u - 2 >= t0:
                if u >= t1:
                    a("s_nop 7")
                maxops(u - 2, 0, 4)
            if u < t1:
                smfma(u, "0", 4, 3, 1)
            elif u == t1:
                a("s_nop 7")
            if u - 2 >= t0:
                maxops(u - 2, 4, 8)
    a("v_max_f32 v%d, v%d, v%d" % (MX, MX, MX + 1))
    a("v_mov_b32 v%d, v%d" % (MX + 1, MX))
    a("s_nop 1")
    a("v_permlane32_swap_b32 v%d, v%d" % (MX, MX + 1))
    a("s_nop 1")
    a("v_max_f32 v%d, v%d, v%d" % (MX, MX, MX + 1))
    for r in range(16):
        a("v_sub_f32 v%d, 0, v%d" % (NEGM + r, MX))
        a("v_mov_b32 v%d, 0" % (OA + r))

    def vread(t):
        vf = VF + (t % 2) * 8
        base = MX + 2 if t < 32 else MX + 3
        a("s_mov_b64 exec, s[42:43]")
        a("ds_read_b128 %s, v%d offset:%d" % (vr(vf, 4), base, (t % 32) * 1280))
        a("ds_read_b128 %s, v%d offset:%d" % (vr(vf + 4, 4), base, (t % 32) * 1280 + 640))
        a("s_mov_b64 exec, -1")

    def exps(t, lo, hi):
        S = SS + (t % 2) * 16
        for r in range(lo, hi):
            a("v_exp_f32 v%d, v%d" % (S + r, S + r))

    def cvts(t):
        S = SS + (t % 2) * 16
        pk = PK + (t % 2) * 8
        for r in range(8):
            a("v_cvt_pk_bf16_f32 v%d, v%d, v%d" % (pk + r, S + 2 * r, S + 2 * r + 1))

    def pv(t, half):
        vf = VF + (t % 2) * 8
        pk = PK + (t % 2) * 8
        a("v_mfma_f32_32x32x16_bf16 %s, %s, %s, %s" % (vr(OA, 16), vr(vf + 4 * half, 4), vr(pk + 4 * half, 4), vr(OA, 16)))

    stamp(a, 3)
    a.vwait_all()
    a("s_barrier")
    kread(0, 2)
    kread(1, 2)
    a("s_waitcnt lgkmcnt(2)")
    smfma(0, vr(NEGM, 16), 2, 2, 0)
    smfma(0, vr(NEGM, 16), 2, 2, 1)
    a("s_nop 7")
    for t in range(65):
        a("s_waitcnt lgkmcnt(0)")
        if t < 64:
            vread(t)
        if t + 2 < 64:
            kread(t + 2, 2)
        if t + 1 < 64:
            smfma(t + 1, vr(NEGM, 16), 2, 2, 0)
        if t < 64:
            exps(t, 0, 4)
        if t + 1 < 64:
            smfma(t + 1, vr(NEGM, 16), 2, 2, 1)
        if t < 64:
            exps(t, 4, 8)
        if t >= 1:
            pv(t - 1, 0)
        if t < 64:
            exps(t, 8, 12)
        if t >= 1:
            pv(t - 1, 1)
        if t < 64:
            exps(t, 12, 16)
            cvts(t)
    a("s_nop 15")
    a("s_nop 3")
    stamp(a, 4)
    stamp_flush(a, 5, 37)
    a("v_cmp_gt_u32 vcc, 32, v2")
    a("s_nop 1")
    a("v_cndmask_b32 v%d, v%d, v%d, vcc" % (MX, OA + 8, OA + 12))
    a("v_rcp_f32 v%d, v%d" % (MX, MX))
    a("s_nop 0")
    for r in range(16):
        a("v_mul_f32 v%d, v%d, v%d" % (OA + r, OA + r, MX))
    for r in range(8):
        a("v_cvt_pk_bf16_f32 v%d, v%d, v%d" % (PK + r, OA + 2 * r, OA + 2 * r + 1))
    a("s_mul_i32 s31, s6, 20")
    a("s_mul_i32 s32, s10, %d" % (40 * 1024))
    a("v_lshrrev_b32 v4, 5, v2")
    a("v_and_b32 v5, 31, v2")
    a("v_lshlrev_b32 v5, 4, v5")
    for g in range(3):
        a("s_add_u32 s35, s31, %d" % (8 * g))
        a("v_lshl_add_u32 v6, v4, 2, s35")
        a("v_lshrrev_b32 v7, 4, v6")
        a("v_lshl_add_u32 v7, v7, 10, v5")
        a("v_bfe_u32 v1, v6, 2, 1")
        a("v_lshl_add_u32 v7, v1, 9, v7")
        a("v_bfe_u32 v1, v6, 3, 1")
        a("v_lshl_add_u32 v7, v1, 3, v7")
        if g == 2:
            a("v_mov_b32 v1, 0x40000000")
            a("v_cndmask_b32 v7, v1, v7, vcc")
        a("buffer_store_dwordx2 %s, v7, s[24:27], s32 offen" % vr(PK + 2 * g, 2))
        a("s_nop 1")
    a.label("L_att_end")
    kernel_end(a, name, 256 if STAMP else 168)
    return "; @launch kernel=%s grid=(256,1,1) block=(512,1,1) lds=163840" % name


def gen_proj(a, name, offA, KSA, offW, final):
    KW = KSA // 4
    NWG = 32 * 10
    kernel_begin(a, name)
    a("s_load_dwordx2 s[4:5], s[0:1], 72")
    if final:
        a("s_load_dwordx2 s[44:45], s[0:1], 56")
    a("s_cmp_ge_u32 s2, %d" % NWG)
    a("s_cbranch_scc1 L_%s_end" % name)
    stamp(a, 0)
    a("s_lshr_b32 s6, s2, 3")
    a("s_mul_hi_u32 s8, s6, 0x%x" % ((1 << 32) // 10 + 1))
    a("s_mul_i32 s9, s8, 10")
    a("s_sub_u32 s9, s6, s9")
    a("s_and_b32 s6, s2, 7")
    a("s_lshl_b32 s6, s6, 2")
    a("s_add_u32 s8, s8, s6")
    a("v_lshrrev_b32 v1, 6, v0")
    a("v_and_b32 v0, 63, v0")
    a("s_nop 0")
    a("v_readfirstlane_b32 s10, v1")
    a("v_and_b32 v1, 31, v0")
    a("v_lshrrev_b32 v2, 5, v0")
    a("v_lshlrev_b32 v3, 4, v0")
    a("s_waitcnt lgkmcnt(0)")
    srd_ws(a, 12, 4, offA, 64 * KSA * 1024)
    srd_ws(a, 16, 4, offW, 20 * KSA * 1024)
    srd_ws(a, 20, 4, OFF_ST, 20 * 2048 * 8)
    srd_ws(a, 24, 4, OFF_X, 64 * 40 * 1024)
    if final:
        srd_ptr(a, 28, 44, 2048 * 640 * 2)
    a("s_mul_i32 s32, s8, %d" % (2 * KSA * 1024))
    a("s_mul_i32 s34, s10, %d" % (KW * 1024))
    a("s_add_u32 s32, s32, s34")
    a("v_add_u32 v4, s32, v3")
    a("v_add_u32 v5, 0x%x, v4" % (KSA * 1024))
    a("s_mul_i32 s33, s9, %d" % (2 * KSA * 1024))
    a("s_add_u32 s33, s33, s34")
    a("v_add_u32 v6, s33, v3")
    a("v_add_u32 v7, 0x%x, v6" % (KSA * 1024))
    a("s_lshr_b32 s35, s10, 1")
    a("s_and_b32 s36, s10, 1")
    a("s_lshl_b32 s37, s8, 1")
    a("s_add_u32 s37, s37, s35")
    a("s_lshl_b32 s38, s9, 1")
    a("s_add_u32 s38, s38, s36")
    a("s_mul_i32 s39, s37, 40")
    a("s_lshl_b32 s41, s38, 1")
    a("s_add_u32 s39, s39, s41")
    a("s_lshl_b32 s39, s39, 10")
    XR = 8
    a("buffer_load_dwordx4 %s, v3, s[24:27], s39 offen" % vr(XR, 4))
    a("buffer_load_dwordx4 %s, v3, s[24:27], s39 offen offset:1024" % vr(XR + 4, 4))
    a.vissue("x")
    a.vissue("x")
    kloop(a, KW, 12, 16, [4, 5], [6, 7], 40, 128, 64, True, stampf=stamp)
    a.vwait_all()
    stamp(a, 4)
    a("s_nop 15")
    a("s_lshl_b32 s41, s10, 14")
    a("v_add_u32 v16, s41, v3")
    for q in range(16):
        a("ds_write_b128 v16, %s offset:%d" % (vr(64 + 4 * q, 4), q * 1024))
    a("s_waitcnt lgkmcnt(0)")
    a("s_barrier")
    stamp(a, 5)
    a("s_lshl_b32 s41, s10, 12")
    a("v_add_u32 v16, s41, v3")
    for src in range(4):
        for q in range(4):
            a("ds_read_b128 %s, v16 offset:%d" % (vr(128 + src * 16 + 4 * q, 4), src * 16384 + q * 1024))
    a("s_waitcnt lgkmcnt(0)")
    for r in range(16):
        a("v_add_f32 v%d, v%d, v%d" % (128 + r, 128 + r, 144 + r))
        a("v_add_f32 v%d, v%d, v%d" % (160 + r, 160 + r, 176 + r))
    for r in range(16):
        a("v_add_f32 v%d, v%d, v%d" % (128 + r, 128 + r, 160 + r))
    for r in range(8):
        a("v_cvt_pk_bf16_f32 v%d, v%d, v%d" % (144 + r, 128 + 2 * r, 128 + 2 * r + 1))
    for r in range(8):
        a("v_lshlrev_b32 v%d, 16, v%d" % (128 + 2 * r, 144 + r))
        a("v_and_b32 v%d, 0xffff0000, v%d" % (128 + 2 * r + 1, 144 + r))
        a("v_lshlrev_b32 v%d, 16, v%d" % (160 + 2 * r, XR + r))
        a("v_and_b32 v%d, 0xffff0000, v%d" % (160 + 2 * r + 1, XR + r))
    for r in range(16):
        a("v_add_f32 v%d, v%d, v%d" % (128 + r, 128 + r, 160 + r))
    for r in range(8):
        a("v_cvt_pk_bf16_f32 v%d, v%d, v%d" % (144 + r, 128 + 2 * r, 128 + 2 * r + 1))
    if final:
        a("s_lshl_b32 s41, s37, 5")
        a("v_add_u32 v17, s41, v1")
        a("s_movk_i32 s42, 1280")
        a("v_mul_lo_u32 v17, v17, s42")
        a("v_lshl_add_u32 v17, v2, 3, v17")
        a("s_lshl_b32 s42, s38, 6")
        for g in range(4):
            a("buffer_store_dwordx2 %s, v17, s[28:31], s42 offen offset:%d" % (vr(144 + 2 * g, 2), g * 16))
    else:
        a("buffer_store_dwordx4 v[144:147], v3, s[24:27], s39 offen")
        a("buffer_store_dwordx4 v[148:151], v3, s[24:27], s39 offen offset:1024")
        a("v_mov_b32 v20, 0x3f803f80")
        a("v_mov_b32 v22, 0")
        a("v_mov_b32 v23, 0")
        for r in range(8):
            a("v_dot2_f32_bf16 v22, v%d, v20, v22" % (144 + r))
            a("v_dot2_f32_bf16 v23, v%d, v%d, v23" % (144 + r, 144 + r))
        a("s_nop 4")
        a("v_mov_b32 v24, v22")
        a("v_mov_b32 v25, v23")
        a("s_nop 1")
        a("v_permlane32_swap_b32 v24, v22")
        a("v_permlane32_swap_b32 v25, v23")
        a("s_nop 1")
        a("v_add_f32 v22, v22, v24")
        a("v_add_f32 v23, v23, v25")
        a("s_lshl_b32 s41, s37, 8")
        a("v_lshl_add_u32 v17, v1, 3, s41")
        a("s_lshl_b32 s42, s38, 14")
        a("buffer_store_dwordx2 v[22:23], v17, s[20:23], s42 offen")
    stamp(a, 6)
    stamp_flush(a, 7, 41)
    a.label("L_%s_end" % name)
    kernel_end(a, name, 256)
    return "; @launch kernel=%s grid=(%d,1,1) block=(256,1,1) lds=65536" % (name, NWG)


def gen_gu(a):
    name = "gu_kernel"
    NWG = 224
    DB = 12
    kernel_begin(a, name)
    a("s_load_dwordx2 s[4:5], s[0:1], 72")
    a("s_cmp_ge_u32 s2, %d" % NWG)
    a("s_cbranch_scc1 L_gu_end")
    a("s_and_b32 s6, s2, 7")
    a("s_lshr_b32 s7, s2, 3")
    a("s_mul_hi_u32 s8, s7, 0x%x" % ((1 << 32) // 7 + 1))
    a("s_mul_i32 s9, s8, 7")
    a("s_sub_u32 s9, s7, s9")
    a("s_lshr_b32 s7, s6, 1")
    a("s_lshl_b32 s7, s7, 2")
    a("s_add_u32 s8, s8, s7")
    a("s_and_b32 s7, s6, 1")
    a("s_mul_i32 s7, s7, 7")
    a("s_add_u32 s9, s9, s7")
    a("v_lshrrev_b32 v1, 6, v0")
    a("v_and_b32 v0, 63, v0")
    a("s_nop 0")
    a("v_readfirstlane_b32 s10, v1")
    a("v_and_b32 v1, 31, v0")
    a("v_lshrrev_b32 v2, 5, v0")
    a("v_lshlrev_b32 v3, 4, v0")
    a("v_add_u32 v4, 0x10000, v3")
    a("v_add_u32 v5, 0x20000, v3")
    a("s_waitcnt lgkmcnt(0)")
    srd_ws(a, 12, 4, OFF_X, 64 * 40 * 1024)
    srd_ws(a, 16, 4, OFF_WG, 6 * MB)
    srd_ws(a, 20, 4, OFF_ST, 20 * 2048 * 8)
    srd_ws(a, 24, 4, OFF_CS + 16384, 32768)
    srd_ws(a, 28, 4, OFF_H, 64 * 108 * 1024)
    a("s_lshl_b32 s11, s9, 2")
    a("s_add_u32 s11, s11, s10")
    a("s_lshl_b32 s33, s8, 2")
    a("s_add_u32 s33, s33, s10")
    a("s_mul_i32 s34, s33, %d" % (40 * 1024))
    a("s_lshl_b32 s35, s10, 10")
    a("s_mul_i32 s36, s11, %d" % (40 * 1024))
    a("v_add_u32 v6, s36, v3")
    a("v_add_u32 v7, 0x%x, v6" % (3 * MB))
    a("s_lshl_b32 s36, s33, 8")
    a("v_lshl_add_u32 v9, v1, 3, s36")
    a("s_lshl_b32 s36, s11, 7")
    a("v_lshl_add_u32 v10, v2, 4, s36")
    a("v_add_u32 v12, 0x4000, v10")
    a("s_lshl_b32 s36, s10, 7")
    a("v_lshl_add_u32 v16, v1, 2, s36")
    SBASE, STOUT, AF, CSB, ACC = 20, 18, 60, 96, 128
    AF = 20
    CSB = 68
    SBASE = 100
    SBASE = 100
    vCS = [(10, 10), (12, 12)]
    a("s_cmp_ge_u32 s11, 54")
    a("s_cbranch_scc1 L_gu_idle")
    a.vm = []
    astat_prologue(a, 4, 2, DB, 12, 16, [6, 7], 34, 35, 3)
    astat_loop(a, 4, 2, DB, 16, [6, 7], 3, AF, ACC, [True, True], 16, STOUT,
               astat_side(a, 20, 9, SBASE, 24, vCS, CSB, [True, True], 2, STOUT))
    a.vwait_all()
    a("v_lshlrev_b32 v17, 2, v1")
    for i in range(4):
        a("ds_read_b32 v%d, v17 offset:%d" % (100 + 2 * i, i * 128))
        a("ds_read_b32 v%d, v17 offset:%d" % (108 + 2 * i, 512 + i * 128))
    a("s_mul_i32 s37, s8, %d" % (4 * 108 * 1024))
    a("s_lshl_b32 s38, s11, 11")
    a("s_add_u32 s37, s37, s38")
    K1 = -2.0 * LOG2E * 0.7978845608028654
    K2 = K1 * 0.044715
    a("v_mov_b32 v116, %s" % fhex(K1))
    a("v_mov_b32 v118, %s" % fhex(K2))
    a("v_mov_b32 v120, 1.0")
    a("s_waitcnt lgkmcnt(0)")
    a("s_nop 7")
    BC = " op_sel_hi:[1,0]"
    BC3 = " op_sel_hi:[0,1,1]"
    for i in range(4):
        dg = ACC + (i * 2 + 0) * 16
        du = ACC + (i * 2 + 1) * 16
        csg, csu = CSB, CSB + 16
        ri, nm = vr(100 + 2 * i, 2), vr(108 + 2 * i, 2)
        T = 20
        for r in range(0, 16, 2):
            a("v_pk_mul_f32 %s, %s, %s%s" % (vr(dg + r, 2), vr(dg + r, 2), ri, BC))
            a("v_pk_mul_f32 %s, %s, %s%s" % (vr(du + r, 2), vr(du + r, 2), ri, BC))
        for r in range(0, 16, 2):
            a("v_pk_fma_f32 %s, %s, %s, %s%s" % (vr(dg + r, 2), nm, vr(csg + r, 2), vr(dg + r, 2), BC3))
            a("v_pk_fma_f32 %s, %s, %s, %s%s" % (vr(du + r, 2), nm, vr(csu + r, 2), vr(du + r, 2), BC3))
        for r in range(0, 16, 2):
            a("v_pk_mul_f32 %s, %s, %s" % (vr(T + r, 2), vr(dg + r, 2), vr(dg + r, 2)))
        for r in range(0, 16, 2):
            a("v_pk_fma_f32 %s, %s, %s, %s op_sel_hi:[1,0,0]" % (vr(T + r, 2), vr(T + r, 2), vr(118, 2), vr(116, 2)))
        for r in range(0, 16, 2):
            a("v_pk_mul_f32 %s, %s, %s" % (vr(T + r, 2), vr(T + r, 2), vr(dg + r, 2)))
        for r in range(16):
            a("v_exp_f32 v%d, v%d" % (T + r, T + r))
        for r in range(0, 16, 2):
            a("v_pk_mul_f32 %s, %s, %s" % (vr(dg + r, 2), vr(dg + r, 2), vr(du + r, 2)))
        for r in range(0, 16, 2):
            a("v_pk_add_f32 %s, %s, %s%s" % (vr(T + r, 2), vr(T + r, 2), vr(120, 2), BC))
        for r in range(16):
            a("v_rcp_f32 v%d, v%d" % (T + r, T + r))
        a("s_nop 0")
        for r in range(0, 16, 2):
            a("v_pk_mul_f32 %s, %s, %s" % (vr(T + r, 2), vr(T + r, 2), vr(dg + r, 2)))
        for r in range(8):
            a("v_cvt_pk_bf16_f32 v%d, v%d, v%d" % (dg + r, T + 2 * r, T + 2 * r + 1))
        a("s_add_u32 s42, s37, 0x%x" % (i * 108 * 1024))
        a("buffer_store_dwordx4 %s, v3, s[28:31], s42 offen" % vr(dg, 4))
        a("buffer_store_dwordx4 %s, v3, s[28:31], s42 offen offset:1024" % vr(dg + 4, 4))
    a("s_branch L_gu_end")
    a.label("L_gu_idle")
    a.vm = []
    astat_prologue(a, 4, 2, DB, 12, 16, [6, 7], 34, 35, 3, active=False)
    astat_loop(a, 4, 2, DB, 16, [6, 7], 3, AF, ACC, [True, True], 16, STOUT,
               astat_side(a, 20, 9, SBASE, 24, vCS, CSB, [True, True], 2, STOUT, active=False), active=False)
    a("s_waitcnt vmcnt(0) lgkmcnt(0)")
    a.label("L_gu_end")
    kernel_end(a, name, 256, agpr=DB * 8)
    return "; @launch kernel=%s grid=(%d,1,1) block=(256,1,1) lds=163840" % (name, NWG)


def main():
    a = Asm()
    l_prep = gen_prep(a)
    l_qkv = gen_qkv(a)
    l_att = gen_attn(a)
    l_wo = gen_proj(a, "wo_kernel", OFF_O, 40, OFF_WO, False)
    l_gu = gen_gu(a)
    l_dn = gen_proj(a, "down_kernel", OFF_H, 108, OFF_WD, False)
    l_dnf = gen_proj(a, "downf_kernel", OFF_H, 108, OFF_WD, True)
    launches = [l_prep, l_qkv, l_att, l_wo, l_gu, l_dn, l_qkv, l_att, l_wo, l_gu, l_dnf]
    out = []
    out += launches
    out.append('.amdgcn_target "amdgcn-amd-amdhsa--gfx950"')
    out.append(".text")
    out.append(a.text())
    out.append('.section .rodata,"a"')
    out.append(".p2align 6")
    for d in DESCS:
        out.append(".p2align 6" + d)
    path = sys.argv[1] if len(sys.argv) > 1 else "cdna_kernels/%s.s" % NAME
    open(path, "w").write("\n".join(out) + "\n")


if __name__ == "__main__":
    main()
```

```python
import struct
import sys

NAME = "interleave_layers__mha_block__glu_gated_geglu__prompt"
MB = 1 << 20
OFF_WQKV = 0
OFF_WO = 4 * MB
OFF_WG = 6 * MB
OFF_WU = 9 * MB
OFF_WD = 12 * MB
OFF_CS = 15 * MB
OFF_X = 16 * MB
OFF_ST = 19 * MB
OFF_Q = 20 * MB
OFF_K = 24 * MB
OFF_V = 28 * MB
OFF_O = 32 * MB
OFF_H = 36 * MB
WS_SIZE = 268435456

LOG2E = 1.4426950408889634
QSCALE = LOG2E / (20.0 ** 0.5)


def f32bits(x):
    return struct.unpack("<I", struct.pack("<f", x))[0]


def fhex(x):
    return "0x%08x" % f32bits(x)


class Asm:
    def __init__(self):
        self.lines = []
        self.vm = []
        self.lab = 0

    def __call__(self, s):
        self.lines.append("    " + s)

    def label(self, name):
        self.lines.append(name + ":")

    def newlabel(self, p="L"):
        self.lab += 1
        return "%s_%d" % (p, self.lab)

    def raw(self, s):
        self.lines.append(s)

    def vissue(self, tag):
        self.vm.append(tag)

    def vwait(self, tag):
        if tag not in self.vm:
            return
        idx = len(self.vm) - 1 - self.vm[::-1].index(tag)
        n = len(self.vm) - 1 - idx
        if n <= 63:
            self("s_waitcnt vmcnt(%d)" % n)
        self.vm = self.vm[idx + 1:]

    def vwait_all(self):
        self("s_waitcnt vmcnt(0)")
        self.vm = []

    def text(self):
        return "\n".join(self.lines)


def vr(b, n):
    return "v[%d:%d]" % (b, b + n - 1)


def sr(b, n):
    return "s[%d:%d]" % (b, b + n - 1)


def kernel_begin(a, name):
    a.raw(".globl %s" % name)
    a.raw(".p2align 8")
    a.raw(".type %s,@function" % name)
    a.label(name)


DESCS = []


def kernel_end(a, name, vgpr, sgpr=102, agpr=0):
    a("s_endpgm")
    acc = (vgpr + 3) // 4 * 4
    if agpr:
        vgpr = acc + agpr
    DESCS.append("""
.amdhsa_kernel %s
  .amdhsa_next_free_vgpr %d
  .amdhsa_next_free_sgpr %d
  .amdhsa_accum_offset %d
  .amdhsa_group_segment_fixed_size 0
  .amdhsa_kernarg_size 80
  .amdhsa_user_sgpr_count 2
  .amdhsa_user_sgpr_kernarg_segment_ptr 1
  .amdhsa_system_sgpr_workgroup_id_x 1
.end_amdhsa_kernel""" % (name, vgpr, sgpr, acc))


def srd_ws(a, d, wsreg, off, size):
    a("s_add_u32 s%d, s%d, 0x%x" % (d, wsreg, off))
    a("s_addc_u32 s%d, s%d, 0" % (d + 1, wsreg + 1))
    a("s_and_b32 s%d, s%d, 0xffff" % (d + 1, d + 1))
    a("s_mov_b32 s%d, 0x%x" % (d + 2, size))
    a("s_mov_b32 s%d, 0x00020000" % (d + 3))


def srd_ptr(a, d, preg, size):
    a("s_mov_b32 s%d, s%d" % (d, preg))
    a("s_and_b32 s%d, s%d, 0xffff" % (d + 1, preg + 1))
    a("s_mov_b32 s%d, 0x%x" % (d + 2, size))
    a("s_mov_b32 s%d, 0x00020000" % (d + 3))


import os
STAMP = int(os.environ.get("STAMP", "0"))


def stamp(a, idx, sreg=90, real=False):
    if not STAMP:
        return
    a("s_memrealtime s[88:89]" if real else "s_memtime s[88:89]")
    a("s_waitcnt lgkmcnt(0)")
    a("s_mov_b32 s%d, s88" % (sreg + idx))


def stamp_flush(a, n, wgsel, sreg=90):
    if not STAMP:
        return
    lab = a.newlabel("L_st")
    a("s_cmp_lg_u32 s2, %d" % wgsel)
    a("s_cbranch_scc1 %s" % lab)
    a("s_load_dwordx2 s[80:81], s[0:1], 64")
    a("s_waitcnt lgkmcnt(0)")
    a("s_and_b32 s81, s81, 0xffff")
    a("s_mov_b32 s82, 256")
    a("s_mov_b32 s83, 0x00020000")
    a("v_mov_b32 v250, 0")
    for i in range(n):
        a("v_mov_b32 v251, s%d" % (sreg + i))
        a("buffer_store_dword v251, v250, s[80:83], 0 offen offset:%d" % (4 * i))
        a("s_nop 1")
    a.label(lab)


def bf16r(a, dst, src):
    a("v_cvt_pk_bf16_f32 v%d, v%d, v%d" % (dst, src, src))
    a("v_lshlrev_b32 v%d, 16, v%d" % (dst, dst))


WJ = [
    ("q", 6, 640 * 1920 * 2, 3840, 10, 15, OFF_WQKV, 40, 60),
    ("o", 8, 640 * 640 * 2, 1280, 10, 5, OFF_WO, 40, 20),
    ("g", 12, 640 * 1728 * 2, 3456, 10, 14, OFF_WG, 40, 54),
    ("u", 14, 640 * 1728 * 2, 3456, 10, 14, OFF_WU, 40, 54),
    ("d", 16, 1728 * 640 * 2, 1280, 27, 5, OFF_WD, 108, 20),
]
CJ = [("q", 6, 640 * 1920 * 2, 3840, 60, 0, 1920), ("g", 12, 640 * 1728 * 2, 3456, 54, 16384, 1728),
      ("u", 14, 640 * 1728 * 2, 3456, 54, 32768, 1728)]
N_CS = sum(c[4] for c in CJ)
N_W = sum(w[4] * w[5] for w in WJ)
WG_W0 = N_CS
WG_X0 = WG_W0 + N_W
WG_P0 = WG_X0 + 160
K0_WGS = WG_P0
RS = 272


def gen_prep(a):
    name = "prep_kernel"
    kernel_begin(a, name)
    a("s_load_dwordx16 s[4:19], s[0:1], 0")
    a("s_load_dwordx4 s[20:23], s[0:1], 64")
    a("v_lshrrev_b32 v1, 6, v0")
    a("v_mov_b32 v40, v0")
    a("v_and_b32 v0, 63, v0")
    a("s_nop 0")
    a("v_readfirstlane_b32 s24, v1")
    a("v_and_b32 v2, 31, v0")
    a("v_lshrrev_b32 v3, 5, v0")
    a("v_lshlrev_b32 v4, 4, v0")
    a("v_and_b32 v41, 15, v40")
    a("v_lshrrev_b32 v42, 4, v40")
    a("s_waitcnt lgkmcnt(0)")
    srd_ws(a, 48, 22, 0, WS_SIZE)
    a("s_cmp_ge_u32 s2, %d" % K0_WGS)
    a("s_cbranch_scc1 L_prep_end")
    a("s_cmp_ge_u32 s2, %d" % WG_P0)
    a("s_cbranch_scc1 L_prep_pad")
    a("s_cmp_ge_u32 s2, %d" % WG_X0)
    a("s_cbranch_scc1 L_prep_x")
    a("s_cmp_lt_u32 s2, %d" % WG_W0)
    a("s_cbranch_scc1 L_prep_cs")
    j0 = WG_W0
    for (lab, ptr, size, ld, nkb, nnb, dst, KS, nct) in WJ:
        nxt = j0 + nkb * nnb
        a("s_cmp_ge_u32 s2, %d" % nxt)
        a("s_cbranch_scc1 L_prep_n%s" % lab)
        srd_ptr(a, 28, ptr, size)
        a("s_mov_b32 s32, %d" % ld)
        a("s_sub_u32 s34, s2, %d" % j0)
        a("s_mul_hi_u32 s37, s34, 0x%x" % ((1 << 32) // nnb + 1))
        a("s_mul_i32 s38, s37, %d" % nnb)
        a("s_sub_u32 s38, s34, s38")
        a("s_mov_b32 s35, 0x%x" % dst)
        a("s_mov_b32 s36, %d" % KS)
        a("s_mov_b32 s33, %d" % nct)
        a("s_branch L_prep_w")
        a.label("L_prep_n%s" % lab)
        j0 = nxt
    a.label("L_prep_w")
    a("s_lshl_b32 s41, s37, 6")
    a("v_add_u32 v5, s41, v42")
    a("v_mul_lo_u32 v5, v5, s32")
    a("s_lshl_b32 s41, s38, 8")
    a("v_lshl_add_u32 v6, v41, 4, s41")
    a("v_add_u32 v5, v5, v6")
    for i in range(4):
        a("s_mul_i32 s42, s32, %d" % (16 * i))
        a("buffer_load_dwordx4 %s, v5, s[28:31], s42 offen" % vr(16 + 4 * i, 4))
    a("v_mul_u32_u24 v6, %d, v42" % RS)
    a("v_lshl_add_u32 v6, v41, 4, v6")
    a("v_bfe_u32 v7, v0, 2, 2")
    a("v_lshl_add_u32 v7, v3, 2, v7")
    a("v_mul_u32_u24 v7, %d, v7" % RS)
    a("v_and_b32 v8, 3, v0")
    a("v_lshl_add_u32 v7, v8, 3, v7")
    a("v_bfe_u32 v8, v0, 4, 1")
    a("v_lshl_add_u32 v7, v8, 5, v7")
    a("s_lshl_b32 s41, s24, 6")
    a("v_add_u32 v7, s41, v7")
    a("s_waitcnt vmcnt(0)")
    for i in range(4):
        a("ds_write_b128 v6, %s offset:%d" % (vr(16 + 4 * i, 4), 16 * i * RS))
    a("s_waitcnt lgkmcnt(0)")
    a("s_barrier")
    for kt in range(2):
        for sx in range(2):
            for g in range(2):
                a("ds_read_b64_tr_b16 %s, v7 offset:%d" % (vr(16 + (kt * 2 + sx) * 4 + 2 * g, 2), (32 * kt + 16 * sx + 8 * g) * RS))
    a("s_lshl_b32 s43, s38, 2")
    a("s_add_u32 s43, s43, s24")
    a("s_cmp_ge_u32 s43, s33")
    a("s_cbranch_scc1 L_prep_end")
    a("s_mul_i32 s43, s43, s36")
    a("s_lshl_b32 s44, s37, 2")
    a("s_add_u32 s43, s43, s44")
    a("s_lshl_b32 s43, s43, 10")
    a("s_add_u32 s43, s43, s35")
    a("s_waitcnt lgkmcnt(0)")
    for f in range(4):
        a("buffer_store_dwordx4 %s, v4, s[48:51], s43 offen offset:%d" % (vr(16 + 4 * f, 4), f * 1024))
    a("s_branch L_prep_end")

    a.label("L_prep_pad")
    a("s_sub_u32 s34, s2, %d" % WG_P0)
    a("s_lshl_b32 s34, s34, 2")
    a("s_add_u32 s34, s34, s24")
    a("s_lshl_b32 s34, s34, 11")
    for i in range(4):
        a("v_mov_b32 v%d, 0" % (16 + i))
    a("v_cmp_eq_u32 vcc, 20, v2")
    a("v_cmp_eq_u32 s[44:45], 24, v2")
    a("s_or_b64 vcc, vcc, s[44:45]")
    a("v_mov_b32 v24, 0x3f803f80")
    a("s_nop 1")
    for i in range(4):
        a("v_cndmask_b32 v%d, 0, v24, vcc" % (20 + i))
    a("s_add_u32 s35, s34, 0x%x" % OFF_Q)
    a("buffer_store_dwordx4 v[16:19], v4, s[48:51], s35 offen offset:1024")
    a("s_add_u32 s35, s34, 0x%x" % OFF_K)
    a("buffer_store_dwordx4 v[16:19], v4, s[48:51], s35 offen offset:1024")
    a("s_add_u32 s35, s34, 0x%x" % OFF_V)
    a("buffer_store_dwordx4 v[20:23], v4, s[48:51], s35 offen")
    a("buffer_store_dwordx4 v[20:23], v4, s[48:51], s35 offen offset:1024")
    a("s_branch L_prep_end")

    a.label("L_prep_x")
    srd_ptr(a, 28, 4, 2048 * 640 * 2)
    a("s_sub_u32 s34, s2, %d" % WG_X0)
    a("s_lshl_b32 s34, s34, 2")
    a("s_add_u32 s34, s34, s24")
    a("s_mul_hi_u32 s37, s34, 0x%x" % ((1 << 32) // 10 + 1))
    a("s_mul_i32 s38, s37, 10")
    a("s_sub_u32 s38, s34, s38")
    a("s_lshl_b32 s39, s37, 5")
    a("v_add_u32 v5, s39, v2")
    a("s_movk_i32 s32, 1280")
    a("v_mul_lo_u32 v6, v5, s32")
    a("v_lshl_add_u32 v6, v3, 3, v6")
    a("s_lshl_b32 s41, s38, 7")
    for kt in range(2):
        for sx in range(2):
            for g in range(2):
                reg = 16 + (kt * 2 + sx) * 4 + g * 2
                a("buffer_load_dwordx2 %s, v6, s[28:31], s41 offen offset:%d" % (vr(reg, 2), kt * 64 + 32 * sx + 16 * g))
    a("s_mul_i32 s43, s37, 40")
    a("s_lshl_b32 s44, s38, 2")
    a("s_add_u32 s43, s43, s44")
    a("s_lshl_b32 s43, s43, 10")
    a("s_add_u32 s43, s43, 0x%x" % OFF_X)
    a("v_mov_b32 v9, 0x3f803f80")
    a("s_waitcnt vmcnt(0)")
    for f in range(4):
        a("buffer_store_dwordx4 %s, v4, s[48:51], s43 offen offset:%d" % (vr(16 + 4 * f, 4), f * 1024))
    for kt in range(2):
        sreg, qreg = 44 + 2 * kt, 45 + 2 * kt
        a("v_mov_b32 v%d, 0" % sreg)
        a("v_mov_b32 v%d, 0" % qreg)
        for i in range(8):
            r = 16 + kt * 8 + i
            a("v_dot2_f32_bf16 v%d, v%d, v9, v%d" % (sreg, r, sreg))
            a("v_dot2_f32_bf16 v%d, v%d, v%d, v%d" % (qreg, r, r, qreg))
    a("s_nop 4")
    for i in range(4):
        a("v_mov_b32 v%d, v%d" % (48 + i, 44 + i))
    a("s_nop 1")
    for i in range(4):
        a("v_permlane32_swap_b32 v%d, v%d" % (48 + i, 44 + i))
    a("s_nop 1")
    for i in range(4):
        a("v_add_f32 v%d, v%d, v%d" % (44 + i, 44 + i, 48 + i))
    a("v_lshlrev_b32 v7, 3, v5")
    a("s_lshl_b32 s44, s38, 15")
    a("s_add_u32 s44, s44, 0x%x" % OFF_ST)
    a("s_add_u32 s45, s44, 16384")
    a("buffer_store_dwordx2 v[44:45], v7, s[48:51], s44 offen")
    a("buffer_store_dwordx2 v[46:47], v7, s[48:51], s45 offen")
    a("s_branch L_prep_end")

    a.label("L_prep_cs")
    j0 = 0
    for (lab, ptr, size, ld, nnb, o, ncol) in CJ:
        nxt = j0 + nnb
        a("s_cmp_ge_u32 s2, %d" % nxt)
        a("s_cbranch_scc1 L_cs_n%s" % lab)
        srd_ptr(a, 28, ptr, size)
        a("s_mov_b32 s32, %d" % ld)
        a("s_sub_u32 s38, s2, %d" % j0)
        srd_ws(a, 52, 22, OFF_CS + o, ncol * 4)
        a("s_branch L_cs_w")
        a.label("L_cs_n%s" % lab)
        j0 = nxt
    a.label("L_cs_w")
    a("v_and_b32 v41, 3, v40")
    a("v_lshrrev_b32 v42, 2, v40")
    a("v_mul_lo_u32 v5, v42, s32")
    a("s_lshl_b32 s41, s38, 6")
    a("v_lshl_add_u32 v6, v41, 4, s41")
    a("v_add_u32 v5, v5, v6")
    for i in range(10):
        a("s_mul_i32 s42, s32, %d" % (64 * i))
        a("buffer_load_dwordx4 %s, v5, s[28:31], s42 offen" % vr(48 + 4 * i, 4))
    for e in range(8):
        a("v_mov_b32 v%d, 0" % (16 + e))
    for i in range(10):
        a("s_waitcnt vmcnt(%d)" % (9 - i))
        for d in range(4):
            r = 48 + 4 * i + d
            a("v_lshlrev_b32 v24, 16, v%d" % r)
            a("v_and_b32 v25, 0xffff0000, v%d" % r)
            a("v_add_f32 v%d, v%d, v24" % (16 + 2 * d, 16 + 2 * d))
            a("v_add_f32 v%d, v%d, v25" % (17 + 2 * d, 17 + 2 * d))
    a("v_lshlrev_b32 v6, 7, v42")
    a("v_lshl_add_u32 v6, v41, 5, v6")
    a("ds_write_b128 v6, v[16:19]")
    a("ds_write_b128 v6, v[20:23] offset:16")
    a("s_waitcnt lgkmcnt(0)")
    a("s_barrier")
    a("s_cmp_ge_u32 s24, 1")
    a("s_cbranch_scc1 L_prep_end")
    a("v_lshlrev_b32 v6, 2, v2")
    a("v_lshl_add_u32 v6, v3, 12, v6")
    for i in range(32):
        a("ds_read_b32 v%d, v6 offset:%d" % (64 + i, i * 128))
    a("s_waitcnt lgkmcnt(0)")
    for i in range(1, 32):
        a("v_add_f32 v64, v64, v%d" % (64 + i))
    a("v_mov_b32 v65, v64")
    a("s_nop 1")
    a("v_permlane32_swap_b32 v65, v64")
    a("s_nop 1")
    a("v_add_f32 v64, v64, v65")
    a("v_lshlrev_b32 v6, 2, v2")
    a("s_lshl_b32 s41, s38, 7")
    a("buffer_store_dword v64, v6, s[52:55], s41 offen")
    a.label("L_prep_end")
    kernel_end(a, name, 128)
    return "; @launch kernel=%s grid=(%d,1,1) block=(256,1,1) lds=%d" % (name, K0_WGS, 64 * RS)


DEPTH = int(__import__("os").environ.get("DEPTH", "8"))


def kloop(a, KS, srdA, srdB, vA, vB, sOff, stage, acc, swapped, tail=None, stampf=None):
    def loads(ks):
        slot = stage + (ks % DEPTH) * 16
        if ks % 4 == 0:
            a("s_mov_b32 s%d, 0x%x" % (sOff, (ks // 4) * 4096))
        imm = (ks % 4) * 1024
        for i in range(2):
            a("buffer_load_dwordx4 %s, v%d, %s, s%d offen offset:%d" % (vr(slot + 4 * i, 4), vA[i], sr(srdA, 4), sOff, imm))
            a.vissue(("k", ks))
        for j in range(2):
            a("buffer_load_dwordx4 %s, v%d, %s, s%d offen offset:%d" % (vr(slot + 8 + 4 * j, 4), vB[j], sr(srdB, 4), sOff, imm))
            a.vissue(("k", ks))

    for ks in range(min(DEPTH, KS)):
        loads(ks)
    ntail = 0
    for ks in range(KS):
        a.vwait(("k", ks))
        if stampf and ks in (0, 8, 16):
            stampf(a, 1 + ks // 8)
        slot = stage + (ks % DEPTH) * 16
        for i in range(2):
            for j in range(2):
                d = acc + (i * 2 + j) * 16
                A = vr(slot + 4 * i, 4)
                B = vr(slot + 8 + 4 * j, 4)
                c = "0" if ks == 0 else vr(d, 16)
                if swapped:
                    a("v_mfma_f32_32x32x16_bf16 %s, %s, %s, %s" % (vr(d, 16), B, A, c))
                else:
                    a("v_mfma_f32_32x32x16_bf16 %s, %s, %s, %s" % (vr(d, 16), A, B, c))
        if ks + DEPTH < KS:
            loads(ks + DEPTH)
        elif tail is not None:
            tail(ntail, slot)
            ntail += 1


def stats_tail(a, srdST, vTok, srdCS, vCS, sTmp, ncs_tiles, cs_swapped, plan):
    def tail(i, slot):
        if i < 5:
            for q in range(8):
                idx = i * 8 + q
                rt, ct = idx // 20, idx % 20
                a("s_mov_b32 s%d, 0x%x" % (sTmp, ct * 16384 + rt * 256))
                a("buffer_load_dwordx2 %s, v%d, %s, s%d offen" % (vr(slot + 2 * q, 2), vTok, sr(srdST, 4), sTmp))
                a.vissue(("st", idx))
                plan[("st", rt, ct)] = slot + 2 * q
        elif i - 5 < ncs_tiles:
            j = i - 5
            if cs_swapped:
                for g in range(4):
                    a("buffer_load_dwordx4 %s, v%d, %s, 0 offen offset:%d" % (vr(slot + 4 * g, 4), vCS[j], sr(srdCS, 4), g * 32))
                    a.vissue(("cs", j))
                plan[("cs", j)] = slot
            else:
                a("buffer_load_dword v%d, v%d, %s, 0 offen" % (slot, vCS[j], sr(srdCS, 4)))
                a.vissue(("cs", j))
                plan[("cs", j)] = slot
    return tail


def stats_finalize(a, plan, out, t):
    for rt in range(2):
        s0 = plan[("st", rt, 0)]
        for ct in range(1, 20):
            r = plan[("st", rt, ct)]
            a("v_add_f32 v%d, v%d, v%d" % (s0, s0, r))
            a("v_add_f32 v%d, v%d, v%d" % (s0 + 1, s0 + 1, r + 1))
        mean, var = t, t + 1
        a("v_mul_f32 v%d, %s, v%d" % (mean, fhex(1.0 / 640), s0))
        a("v_mul_f32 v%d, %s, v%d" % (var, fhex(1.0 / 640), s0 + 1))
        a("v_fma_f32 v%d, -v%d, v%d, v%d" % (var, mean, mean, var))
        a("v_max_f32 v%d, 0, v%d" % (var, var))
        bf16r(a, mean, mean)
        bf16r(a, var, var)
        a("v_add_f32 v%d, %s, v%d" % (var, fhex(1e-5), var))
        bf16r(a, var, var)
        a("v_sqrt_f32 v%d, v%d" % (var, var))
        a("s_nop 0")
        bf16r(a, var, var)
        a("v_rcp_f32 v%d, v%d" % (out + 2 * rt, var))
        a("s_nop 0")
        a("v_mul_f32 v%d, v%d, v%d" % (out + 2 * rt + 1, mean, out + 2 * rt))
        a("v_sub_f32 v%d, 0, v%d" % (out + 2 * rt + 1, out + 2 * rt + 1))


def ar(b, n):
    return "a[%d:%d]" % (b, b + n - 1)


def adma1(a, NRT, srdA, sAoff, sWave, vLane16, g, i):
    per = 10 * NRT // 4
    f0 = 4 * (g * per + i)
    a("s_add_u32 s42, s%d, 0x%x" % (sWave, f0 * 1024))
    a("s_mov_b32 m0, s42")
    a("s_add_u32 s43, s%d, 0x%x" % (sAoff, (f0 // NRT) * 1024))
    a("buffer_load_dwordx4 v%d, %s, s43 offen lds" % (vLane16, sr(srdA, 4)))
    a.vissue(("A", g))


def astat_prologue(a, NRT, TN, DB, srdA, srdB, vB, sAoff, sWave, vLane16, active=True):
    per = 10 * NRT // 4
    for i in range(per):
        adma1(a, NRT, srdA, sAoff, sWave, vLane16, 0, i)
        if active and i < DB:
            bload(a, i, TN, DB, srdB, vB)
    if active:
        for ks in range(per, DB):
            bload(a, ks, TN, DB, srdB, vB)
    a.adma_args = (NRT, srdA, sAoff, sWave, vLane16)


def astat_adma_in_loop(a, ks):
    NRT = a.adma_args[0]
    per = 10 * NRT // 4
    g = 1 + ks // 5
    if g > 3:
        return
    n = (per + 4) // 5
    for i in range((ks % 5) * n, min(per, (ks % 5 + 1) * n)):
        adma1(a, *a.adma_args, g, i)


def astat_side(a, srdST, vTok, SBASE, srdCS, vCS, CSB, cs_swapped, TN, STOUT, active=True):
    def cb(ks):
        if ks in (7, 9, 11, 13, 15):
            b = (ks - 7) // 2
            a.vwait(("st", b))
            sl = SBASE + (b % 3) * 8
            for q in range(4):
                if b == 0 and q == 0:
                    a("v_mov_b32 v%d, v%d" % (SBASE + 24, sl))
                    a("v_mov_b32 v%d, v%d" % (SBASE + 25, sl + 1))
                else:
                    a("v_add_f32 v%d, v%d, v%d" % (SBASE + 24, SBASE + 24, sl + 2 * q))
                    a("v_add_f32 v%d, v%d, v%d" % (SBASE + 25, SBASE + 25, sl + 2 * q + 1))
        if ks in (1, 3, 5, 7, 9):
            b = (ks - 1) // 2
            sl = SBASE + (b % 3) * 8
            for q in range(4):
                a("s_mov_b32 s41, 0x%x" % ((b * 4 + q) * 16384))
                a("buffer_load_dwordx2 %s, v%d, %s, s41 offen" % (vr(sl + 2 * q, 2), vTok, sr(srdST, 4)))
                a.vissue(("st", b))
        if ks == 6 and active:
            for j in range(TN):
                if cs_swapped[j]:
                    for g in range(4):
                        a("buffer_load_dwordx4 %s, v%d, %s, 0 offen offset:%d" % (vr(CSB + 16 * j + 4 * g, 4), vCS[j][0], sr(srdCS, 4), g * 32))
                        a.vissue("cs")
                else:
                    a("buffer_load_dword v%d, v%d, %s, 0 offen" % (CSB + 16 * j, vCS[j][1], sr(srdCS, 4)))
                    a.vissue("cs")
        if ks == 17:
            astat_stats(a, SBASE, STOUT)
    return cb


def bload(a, ks, TN, DB, srdB, vB):
    slot = (ks % DB) * TN * 4
    if ks % 4 == 0:
        a("s_mov_b32 s40, 0x%x" % ((ks // 4) * 4096))
    for j in range(TN):
        a("buffer_load_dwordx4 %s, v%d, %s, s40 offen offset:%d" % (ar(slot + 4 * j, 4), vB[j], sr(srdB, 4), (ks % 4) * 1024))
        a.vissue(("B", ks))


def astat_stats(a, SBASE, out):
    mean, var = SBASE + 2, SBASE + 3
    a("v_mul_f32 v%d, %s, v%d" % (mean, fhex(1.0 / 640), SBASE + 24))
    a("v_mul_f32 v%d, %s, v%d" % (var, fhex(1.0 / 640), SBASE + 25))
    a("v_fma_f32 v%d, -v%d, v%d, v%d" % (var, mean, mean, var))
    a("v_max_f32 v%d, 0, v%d" % (var, var))
    bf16r(a, mean, mean)
    bf16r(a, var, var)
    a("v_add_f32 v%d, %s, v%d" % (var, fhex(1e-5), var))
    bf16r(a, var, var)
    a("v_sqrt_f32 v%d, v%d" % (var, var))
    a("s_nop 0")
    bf16r(a, var, var)
    a("v_rcp_f32 v%d, v%d" % (out, var))
    a("s_nop 0")
    a("v_mul_f32 v%d, v%d, v%d" % (out + 1, mean, out))
    a("v_sub_f32 v%d, 0, v%d" % (out + 1, out + 1))


def astat_loop(a, NRT, TN, DB, srdB, vB, vLane16, AF, acc, swapped, vStW, STOUT, side, active=True):
    KS = 40

    def aread(ks):
        base = AF + (ks % 3) * NRT * 4
        for i in range(NRT):
            off = (ks * NRT + i) * 1024
            if off < 65536:
                a("ds_read_b128 %s, v%d offset:%d" % (vr(base + 4 * i, 4), vLane16, off))
            elif off < 131072:
                a("ds_read_b128 %s, v%d offset:%d" % (vr(base + 4 * i, 4), vLane16 + 1, off - 65536))
            else:
                a("ds_read_b128 %s, v%d offset:%d" % (vr(base + 4 * i, 4), vLane16 + 2, off - 131072))

    for ks in range(KS):
        if ks % 10 == 0:
            a.vwait(("A", ks // 10))
            a("s_barrier")
            stamp(a, 2 + ks // 10)
            if ks == 20:
                a("ds_write_b32 v%d, v%d" % (vStW, STOUT))
                a("ds_write_b32 v%d, v%d offset:%d" % (vStW, STOUT + 1, NRT * 128))
                a("s_waitcnt lgkmcnt(0)")
            if active:
                aread(ks)
                aread(ks + 1)
        if not active:
            astat_adma_in_loop(a, ks)
            side(ks)
            continue
        if ks % 10 < 8:
            aread(ks + 2)
        nout = min(2, 9 - ks % 10) * NRT
        a("s_waitcnt lgkmcnt(%d)" % nout)
        a.vwait(("B", ks))
        base = AF + (ks % 3) * NRT * 4
        slot = (ks % DB) * TN * 4
        for j in range(TN):
            for i in range(NRT):
                d = acc + (i * TN + j) * 16
                A = vr(base + 4 * i, 4)
                B = ar(slot + 4 * j, 4)
                c = "0" if ks == 0 else vr(d, 16)
                if swapped[j]:
                    a("v_mfma_f32_32x32x16_bf16 %s, %s, %s, %s" % (vr(d, 16), B, A, c))
                else:
                    a("v_mfma_f32_32x32x16_bf16 %s, %s, %s, %s" % (vr(d, 16), A, B, c))
        astat_adma_in_loop(a, ks)
        if ks + DB < KS:
            bload(a, ks + DB, TN, DB, srdB, vB)
        side(ks)


def gen_qkv(a):
    name = "qkv_kernel"
    NWG = 240
    DB = 16
    kernel_begin(a, name)
    a("s_load_dwordx2 s[4:5], s[0:1], 72")
    a("s_cmp_ge_u32 s2, %d" % NWG)
    a("s_cbranch_scc1 L_qkv_end")
    stamp(a, 0)
    a("s_and_b32 s6, s2, 7")
    a("s_lshr_b32 s7, s2, 3")
    a("s_mul_hi_u32 s8, s7, 0x%x" % ((1 << 32) // 15 + 1))
    a("s_mul_i32 s9, s8, 15")
    a("s_sub_u32 s9, s7, s9")
    a("s_lshl_b32 s6, s6, 1")
    a("s_add_u32 s8, s8, s6")
    a("v_lshrrev_b32 v1, 6, v0")
    a("v_and_b32 v0, 63, v0")
    a("s_nop 0")
    a("v_readfirstlane_b32 s10, v1")
    a("v_and_b32 v1, 31, v0")
    a("v_lshrrev_b32 v2, 5, v0")
    a("v_lshlrev_b32 v3, 4, v0")
    a("v_add_u32 v4, 0x10000, v3")
    a("v_add_u32 v5, 0x20000, v3")
    a("s_waitcnt lgkmcnt(0)")
    srd_ws(a, 12, 4, OFF_X, 64 * 40 * 1024)
    srd_ws(a, 16, 4, OFF_WQKV, 60 * 40 * 1024)
    srd_ws(a, 20, 4, OFF_ST, 20 * 2048 * 8)
    srd_ws(a, 24, 4, OFF_CS, 1920 * 4)
    srd_ws(a, 28, 4, OFF_Q, 12 * MB)
    a("s_lshl_b32 s11, s9, 2")
    a("s_add_u32 s11, s11, s10")
    a("s_lshl_b32 s33, s8, 2")
    a("s_add_u32 s33, s33, s10")
    a("s_mul_i32 s34, s33, %d" % (40 * 1024))
    a("s_lshl_b32 s35, s10, 10")
    a("s_mul_i32 s36, s11, %d" % (40 * 1024))
    a("v_add_u32 v6, s36, v3")
    a("s_lshl_b32 s36, s33, 8")
    a("v_lshl_add_u32 v9, v1, 3, s36")
    a("s_lshl_b32 s36, s11, 7")
    a("v_lshl_add_u32 v10, v2, 4, s36")
    a("v_lshl_add_u32 v11, v1, 2, s36")
    a("s_lshl_b32 s36, s10, 7")
    a("v_lshl_add_u32 v16, v1, 2, s36")
    a("s_mul_hi_u32 s44, s11, 0x%x" % ((1 << 32) // 20 + 1))
    a("s_mul_i32 s45, s44, 20")
    a("s_sub_u32 s45, s11, s45")
    a("s_lshl_b32 s45, s45, 5")
    a("s_lshl_b32 s46, s44, 22")
    a("s_mul_i32 s47, s8, %d" % (4 * 1280))
    a("s_add_u32 s46, s46, s47")
    STOUT, AF, CSB, SBASE, ACC = 18, 20, 68, 100, 128
    a("s_cmp_eq_u32 s44, 2")
    a("s_cbranch_scc1 L_qkv_v")
    for path, sw in (("qk", [True]), ("v", [False])):
        a.label("L_qkv_" + path)
        a.vm = []
        astat_prologue(a, 4, 1, DB, 12, 16, [6], 34, 35, 3)
        stamp(a, 1)
        astat_loop(a, 4, 1, DB, 16, [6], 3, AF, ACC, sw, 16, STOUT,
                   astat_side(a, 20, 9, SBASE, 24, [(10, 11)], CSB, sw, 1, STOUT))
        a.vwait_all()
        stamp(a, 6)
        if sw[0]:
            a("v_lshlrev_b32 v17, 2, v1")
            for i in range(4):
                a("ds_read_b32 v%d, v17 offset:%d" % (100 + i, i * 128))
                a("ds_read_b32 v%d, v17 offset:%d" % (104 + i, 512 + i * 128))
            a("s_cmp_eq_u32 s44, 0")
            a("s_cselect_b32 s48, %s, 1.0" % fhex(QSCALE))
            a("v_lshlrev_b32 v24, 4, v1")
            for g in range(4):
                a("s_add_u32 s49, s45, %d" % (8 * g))
                a("v_lshl_add_u32 v25, v2, 2, s49")
                a("v_mul_u32_u24 v26, 3277, v25")
                a("v_lshrrev_b32 v26, 16, v26")
                a("v_mul_u32_u24 v27, 20, v26")
                a("v_sub_u32 v27, v25, v27")
                a("v_lshrrev_b32 v27, 2, v27")
                a("v_mul_u32_u24 v28, 0x14000, v26")
                a("v_and_b32 v29, 1, v27")
                a("v_lshl_add_u32 v30, v29, 9, v24")
                a("v_bfe_u32 v29, v27, 1, 1")
                a("v_lshl_add_u32 v30, v29, 3, v30")
                a("v_lshrrev_b32 v29, 1, v24")
                a("v_add_u32 v29, 1024, v29")
                a("v_cmp_eq_u32 vcc, 4, v27")
                a("s_nop 1")
                a("v_cndmask_b32 v30, v30, v29, vcc")
                a("v_add_u32 v%d, v28, v30" % (20 + g))
            a("s_waitcnt lgkmcnt(0)")
            for i in range(4):
                d = ACC + i * 16
                a("v_mul_f32 v56, s48, v%d" % (100 + i))
                a("v_mul_f32 v57, s48, v%d" % (104 + i))
                for r in range(16):
                    a("v_mul_f32 v%d, v%d, v56" % (d + r, d + r))
                    a("v_fma_f32 v%d, v57, v%d, v%d" % (d + r, CSB + r, d + r))
                for r in range(8):
                    a("v_cvt_pk_bf16_f32 v%d, v%d, v%d" % (d + r, d + 2 * r, d + 2 * r + 1))
                a("s_add_u32 s49, s46, %d" % (i * 1280))
                for g in range(4):
                    a("buffer_store_dwordx2 %s, v%d, s[28:31], s49 offen" % (vr(d + 2 * g, 2), 20 + g))
        else:
            a("v_add_u32 v25, s45, v1")
            a("v_mul_u32_u24 v26, 3277, v25")
            a("v_lshrrev_b32 v26, 16, v26")
            a("v_mul_u32_u24 v27, 20, v26")
            a("v_sub_u32 v27, v25, v27")
            a("v_mul_u32_u24 v28, 0x14000, v26")
            a("v_lshl_add_u32 v28, v27, 4, v28")
            a("v_mul_u32_u24 v29, 320, v2")
            a("v_add_u32 v20, v28, v29")
            a("v_lshlrev_b32 v17, 4, v2")
            for i in range(4):
                for g in range(4):
                    a("ds_read_b128 %s, v17 offset:%d" % (vr(24 + 4 * g, 4), i * 128 + g * 32))
                    a("ds_read_b128 %s, v17 offset:%d" % (vr(40 + 4 * g, 4), 512 + i * 128 + g * 32))
                a("s_waitcnt lgkmcnt(0)")
                d = ACC + i * 16
                for r in range(16):
                    a("v_mul_f32 v%d, v%d, v%d" % (d + r, d + r, 24 + r))
                    a("v_fma_f32 v%d, v%d, v%d, v%d" % (d + r, 40 + r, CSB, d + r))
                for r in range(8):
                    a("v_cvt_pk_bf16_f32 v%d, v%d, v%d" % (d + r, d + 2 * r, d + 2 * r + 1))
                a("s_add_u32 s49, s46, %d" % (i * 1280))
                a("buffer_store_dwordx4 %s, v20, s[28:31], s49 offen" % vr(d, 4))
                a("buffer_store_dwordx4 %s, v20, s[28:31], s49 offen offset:640" % vr(d + 4, 4))
        stamp(a, 7)
        stamp_flush(a, 8, 41)
        a("s_branch L_qkv_end")
    a.label("L_qkv_end")
    kernel_end(a, name, 256, agpr=DB * 4)
    return "; @launch kernel=%s grid=(%d,1,1) block=(256,1,1) lds=163840" % (name, NWG)


def gen_attn(a):
    name = "attn_kernel"
    kernel_begin(a, name)
    a("s_load_dwordx2 s[4:5], s[0:1], 72")
    a("s_cmp_ge_u32 s2, 256")
    a("s_cbranch_scc1 L_att_end")
    stamp(a, 0)
    a("s_and_b32 s6, s2, 31")
    a("s_lshr_b32 s7, s2, 5")
    a("v_lshrrev_b32 v1, 6, v0")
    a("s_nop 0")
    a("v_readfirstlane_b32 s8, v1")
    a("v_and_b32 v2, 63, v0")
    a("v_lshlrev_b32 v3, 4, v2")
    a("s_waitcnt lgkmcnt(0)")
    srd_ws(a, 12, 4, OFF_Q, 4 * MB)
    srd_ws(a, 16, 4, OFF_K, 4 * MB)
    srd_ws(a, 20, 4, OFF_V, 4 * MB)
    srd_ws(a, 24, 4, OFF_O, 4 * MB)
    a("s_mul_i32 s9, s6, 81920")
    a("s_lshl_b32 s10, s7, 3")
    a("s_add_u32 s10, s10, s8")
    a("s_mul_i32 s11, s10, 1280")
    a("s_add_u32 s11, s11, s9")
    QF = 8
    NEGM = 16
    SS = 32
    PK = 80
    OA = 96
    KF = 112
    VF = 144
    MX = 160
    VBASE = 81920
    a("s_mov_b32 s40, -1")
    a("s_mov_b32 s41, 0")
    a("s_mov_b32 s42, 0x000fffff")
    a("s_mov_b32 s43, 0x000fffff")
    a.vm = []
    for r in range(4, 8):
        a("v_mov_b32 v%d, 0" % (QF + r))
    a("v_lshlrev_b32 v4, 3, v2")
    a("buffer_load_dwordx4 %s, v3, s[12:15], s11 offen" % vr(QF, 4))
    a("s_mov_b64 exec, s[40:41]")
    a("buffer_load_dwordx2 %s, v4, s[12:15], s11 offen offset:1024" % vr(QF + 4, 2))
    a("s_mov_b64 exec, -1")
    a.vissue("q")
    a.vissue("q")
    a("s_lshl_b32 s33, s8, 10")
    a("s_add_u32 s34, s9, s33")

    def dma(srd, goff, loff, tag):
        a("s_add_u32 s35, s33, 0x%x" % loff)
        a("s_mov_b32 m0, s35")
        a("s_add_u32 s36, s34, 0x%x" % goff)
        a("buffer_load_dwordx4 v3, %s, s36 offen lds" % sr(srd, 4))
        a.vissue(tag)

    for i in range(10):
        dma(16, i * 8192, i * 8192, ("K", i))
    for i in range(10):
        dma(20, i * 8192, VBASE + i * 8192, ("V", i))
    a("v_mov_b32 v%d, 0xff800000" % MX)
    a("v_mov_b32 v%d, 0xff800000" % (MX + 1))
    a("v_mov_b32 v6, v3")
    a("v_add_u32 v5, %d, v3" % (32 * 1280))
    a("v_add_u32 v1, %d, v4" % (32 * 1280))
    a("v_and_b32 v7, 31, v2")
    a("v_lshrrev_b32 v%d, 5, v2" % (MX + 2))
    a("v_mul_u32_u24 v%d, 320, v%d" % (MX + 2, MX + 2))
    a("v_lshl_add_u32 v%d, v7, 4, v%d" % (MX + 2, MX + 2))
    a("v_add_u32 v%d, %d, v%d" % (MX + 2, VBASE, MX + 2))
    a("v_add_u32 v%d, %d, v%d" % (MX + 3, 32 * 1280, MX + 2))
    for st in range(4):
        for r in range(4, 8):
            a("v_mov_b32 v%d, 0" % (KF + st * 8 + r))
    a("v_cmp_eq_u32 vcc, 20, v7")
    a("v_cmp_eq_u32 s[44:45], 24, v7")
    a("s_or_b64 vcc, vcc, s[44:45]")
    a("v_mov_b32 v7, 0x3f803f80")
    a("s_nop 1")
    for r in range(16):
        a("v_cndmask_b32 v%d, 0, v7, vcc" % (VF + r))

    def kread(t, nset):
        kf = KF + (t % nset) * 8
        a("ds_read_b128 %s, v%d offset:%d" % (vr(kf, 4), 6 if t < 32 else 5, (t % 32) * 1280))
        a("s_mov_b64 exec, s[40:41]")
        a("ds_read_b64 %s, v%d offset:%d" % (vr(kf + 4, 2), 4 if t < 32 else 1, (t % 32) * 1280 + 1024))
        a("s_mov_b64 exec, -1")

    def smfma(t, c0, nset, nS, half):
        kf = KF + (t % nset) * 8
        S = SS + (t % nS) * 16
        if half == 0:
            a("v_mfma_f32_32x32x16_bf16 %s, %s, %s, %s" % (vr(S, 16), vr(kf, 4), vr(QF, 4), c0))
        else:
            a("v_mfma_f32_32x32x16_bf16 %s, %s, %s, %s" % (vr(S, 16), vr(kf + 4, 4), vr(QF + 4, 4), vr(S, 16)))

    def maxops(t, lo, hi):
        S = SS + (t % 3) * 16
        for r in range(lo, hi):
            m = MX + r % 2
            a("v_max3_f32 v%d, v%d, v%d, v%d" % (m, S + 2 * r, S + 2 * r + 1, m))

    for (t0, t1, lastc) in ((0, 16, 2), (16, 64, 9)):
        a.vwait(("K", lastc))
        a("s_barrier")
        stamp(a, 1 if t0 == 0 else 2)
        for t in range(t0, t0 + 3):
            kread(t, 4)
        for u in range(t0, t1 + 2):
            if u < t1:
                nout = min(2, t1 - 1 - u) * 2
                a("s_waitcnt lgkmcnt(%d)" % nout)
                if u + 3 < t1:
                    kread(u + 3, 4)
                smfma(u, "0", 4, 3, 0)
            if u - 2 >= t0:
                if u >= t1:
                    a("s_nop 7")
                maxops(u - 2, 0, 4)
            if u < t1:
                smfma(u, "0", 4, 3, 1)
            elif u == t1:
                a("s_nop 7")
            if u - 2 >= t0:
                maxops(u - 2, 4, 8)
    a("v_max_f32 v%d, v%d, v%d" % (MX, MX, MX + 1))
    a("v_mov_b32 v%d, v%d" % (MX + 1, MX))
    a("s_nop 1")
    a("v_permlane32_swap_b32 v%d, v%d" % (MX, MX + 1))
    a("s_nop 1")
    a("v_max_f32 v%d, v%d, v%d" % (MX, MX, MX + 1))
    for r in range(16):
        a("v_sub_f32 v%d, 0, v%d" % (NEGM + r, MX))
        a("v_mov_b32 v%d, 0" % (OA + r))

    def vread(t):
        vf = VF + (t % 2) * 8
        base = MX + 2 if t < 32 else MX + 3
        a("s_mov_b64 exec, s[42:43]")
        a("ds_read_b128 %s, v%d offset:%d" % (vr(vf, 4), base, (t % 32) * 1280))
        a("ds_read_b128 %s, v%d offset:%d" % (vr(vf + 4, 4), base, (t % 32) * 1280 + 640))
        a("s_mov_b64 exec, -1")

    def exps(t, lo, hi):
        S = SS + (t % 2) * 16
        for r in range(lo, hi):
            a("v_exp_f32 v%d, v%d" % (S + r, S + r))

    def cvts(t):
        S = SS + (t % 2) * 16
        pk = PK + (t % 2) * 8
        for r in range(8):
            a("v_cvt_pk_bf16_f32 v%d, v%d, v%d" % (pk + r, S + 2 * r, S + 2 * r + 1))

    def pv(t, half):
        vf = VF + (t % 2) * 8
        pk = PK + (t % 2) * 8
        a("v_mfma_f32_32x32x16_bf16 %s, %s, %s, %s" % (vr(OA, 16), vr(vf + 4 * half, 4), vr(pk + 4 * half, 4), vr(OA, 16)))

    stamp(a, 3)
    a.vwait_all()
    a("s_barrier")
    kread(0, 2)
    kread(1, 2)
    a("s_waitcnt lgkmcnt(2)")
    smfma(0, vr(NEGM, 16), 2, 2, 0)
    smfma(0, vr(NEGM, 16), 2, 2, 1)
    a("s_nop 7")
    for t in range(65):
        a("s_waitcnt lgkmcnt(0)")
        if t < 64:
            vread(t)
        if t + 2 < 64:
            kread(t + 2, 2)
        if t + 1 < 64:
            smfma(t + 1, vr(NEGM, 16), 2, 2, 0)
        if t < 64:
            exps(t, 0, 4)
        if t + 1 < 64:
            smfma(t + 1, vr(NEGM, 16), 2, 2, 1)
        if t < 64:
            exps(t, 4, 8)
        if t >= 1:
            pv(t - 1, 0)
        if t < 64:
            exps(t, 8, 12)
        if t >= 1:
            pv(t - 1, 1)
        if t < 64:
            exps(t, 12, 16)
            cvts(t)
    a("s_nop 15")
    a("s_nop 3")
    stamp(a, 4)
    stamp_flush(a, 5, 37)
    a("v_cmp_gt_u32 vcc, 32, v2")
    a("s_nop 1")
    a("v_cndmask_b32 v%d, v%d, v%d, vcc" % (MX, OA + 8, OA + 12))
    a("v_rcp_f32 v%d, v%d" % (MX, MX))
    a("s_nop 0")
    for r in range(16):
        a("v_mul_f32 v%d, v%d, v%d" % (OA + r, OA + r, MX))
    for r in range(8):
        a("v_cvt_pk_bf16_f32 v%d, v%d, v%d" % (PK + r, OA + 2 * r, OA + 2 * r + 1))
    a("s_mul_i32 s31, s6, 20")
    a("s_mul_i32 s32, s10, %d" % (40 * 1024))
    a("v_lshrrev_b32 v4, 5, v2")
    a("v_and_b32 v5, 31, v2")
    a("v_lshlrev_b32 v5, 4, v5")
    for g in range(3):
        a("s_add_u32 s35, s31, %d" % (8 * g))
        a("v_lshl_add_u32 v6, v4, 2, s35")
        a("v_lshrrev_b32 v7, 4, v6")
        a("v_lshl_add_u32 v7, v7, 10, v5")
        a("v_bfe_u32 v1, v6, 2, 1")
        a("v_lshl_add_u32 v7, v1, 9, v7")
        a("v_bfe_u32 v1, v6, 3, 1")
        a("v_lshl_add_u32 v7, v1, 3, v7")
        if g == 2:
            a("v_mov_b32 v1, 0x40000000")
            a("v_cndmask_b32 v7, v1, v7, vcc")
        a("buffer_store_dwordx2 %s, v7, s[24:27], s32 offen" % vr(PK + 2 * g, 2))
        a("s_nop 1")
    a.label("L_att_end")
    kernel_end(a, name, 256 if STAMP else 168)
    return "; @launch kernel=%s grid=(256,1,1) block=(512,1,1) lds=163840" % name


def gen_proj(a, name, offA, KSA, offW, final):
    KW = KSA // 4
    NWG = 32 * 10
    kernel_begin(a, name)
    a("s_load_dwordx2 s[4:5], s[0:1], 72")
    if final:
        a("s_load_dwordx2 s[44:45], s[0:1], 56")
    a("s_cmp_ge_u32 s2, %d" % NWG)
    a("s_cbranch_scc1 L_%s_end" % name)
    stamp(a, 0)
    a("s_lshr_b32 s6, s2, 3")
    a("s_mul_hi_u32 s8, s6, 0x%x" % ((1 << 32) // 10 + 1))
    a("s_mul_i32 s9, s8, 10")
    a("s_sub_u32 s9, s6, s9")
    a("s_and_b32 s6, s2, 7")
    a("s_lshl_b32 s6, s6, 2")
    a("s_add_u32 s8, s8, s6")
    a("v_lshrrev_b32 v1, 6, v0")
    a("v_and_b32 v0, 63, v0")
    a("s_nop 0")
    a("v_readfirstlane_b32 s10, v1")
    a("v_and_b32 v1, 31, v0")
    a("v_lshrrev_b32 v2, 5, v0")
    a("v_lshlrev_b32 v3, 4, v0")
    a("s_waitcnt lgkmcnt(0)")
    srd_ws(a, 12, 4, offA, 64 * KSA * 1024)
    srd_ws(a, 16, 4, offW, 20 * KSA * 1024)
    srd_ws(a, 20, 4, OFF_ST, 20 * 2048 * 8)
    srd_ws(a, 24, 4, OFF_X, 64 * 40 * 1024)
    if final:
        srd_ptr(a, 28, 44, 2048 * 640 * 2)
    a("s_mul_i32 s32, s8, %d" % (2 * KSA * 1024))
    a("s_mul_i32 s34, s10, %d" % (KW * 1024))
    a("s_add_u32 s32, s32, s34")
    a("v_add_u32 v4, s32, v3")
    a("v_add_u32 v5, 0x%x, v4" % (KSA * 1024))
    a("s_mul_i32 s33, s9, %d" % (2 * KSA * 1024))
    a("s_add_u32 s33, s33, s34")
    a("v_add_u32 v6, s33, v3")
    a("v_add_u32 v7, 0x%x, v6" % (KSA * 1024))
    a("s_lshr_b32 s35, s10, 1")
    a("s_and_b32 s36, s10, 1")
    a("s_lshl_b32 s37, s8, 1")
    a("s_add_u32 s37, s37, s35")
    a("s_lshl_b32 s38, s9, 1")
    a("s_add_u32 s38, s38, s36")
    a("s_mul_i32 s39, s37, 40")
    a("s_lshl_b32 s41, s38, 1")
    a("s_add_u32 s39, s39, s41")
    a("s_lshl_b32 s39, s39, 10")
    XR = 8
    a("buffer_load_dwordx4 %s, v3, s[24:27], s39 offen" % vr(XR, 4))
    a("buffer_load_dwordx4 %s, v3, s[24:27], s39 offen offset:1024" % vr(XR + 4, 4))
    a.vissue("x")
    a.vissue("x")
    kloop(a, KW, 12, 16, [4, 5], [6, 7], 40, 128, 64, True, stampf=stamp)
    a.vwait_all()
    stamp(a, 4)
    a("s_nop 15")
    a("s_lshl_b32 s41, s10, 14")
    a("v_add_u32 v16, s41, v3")
    for q in range(16):
        a("ds_write_b128 v16, %s offset:%d" % (vr(64 + 4 * q, 4), q * 1024))
    a("s_waitcnt lgkmcnt(0)")
    a("s_barrier")
    stamp(a, 5)
    a("s_lshl_b32 s41, s10, 12")
    a("v_add_u32 v16, s41, v3")
    for src in range(4):
        for q in range(4):
            a("ds_read_b128 %s, v16 offset:%d" % (vr(128 + src * 16 + 4 * q, 4), src * 16384 + q * 1024))
    a("s_waitcnt lgkmcnt(0)")
    for r in range(16):
        a("v_add_f32 v%d, v%d, v%d" % (128 + r, 128 + r, 144 + r))
        a("v_add_f32 v%d, v%d, v%d" % (160 + r, 160 + r, 176 + r))
    for r in range(16):
        a("v_add_f32 v%d, v%d, v%d" % (128 + r, 128 + r, 160 + r))
    for r in range(8):
        a("v_cvt_pk_bf16_f32 v%d, v%d, v%d" % (144 + r, 128 + 2 * r, 128 + 2 * r + 1))
    for r in range(8):
        a("v_lshlrev_b32 v%d, 16, v%d" % (128 + 2 * r, 144 + r))
        a("v_and_b32 v%d, 0xffff0000, v%d" % (128 + 2 * r + 1, 144 + r))
        a("v_lshlrev_b32 v%d, 16, v%d" % (160 + 2 * r, XR + r))
        a("v_and_b32 v%d, 0xffff0000, v%d" % (160 + 2 * r + 1, XR + r))
    for r in range(16):
        a("v_add_f32 v%d, v%d, v%d" % (128 + r, 128 + r, 160 + r))
    for r in range(8):
        a("v_cvt_pk_bf16_f32 v%d, v%d, v%d" % (144 + r, 128 + 2 * r, 128 + 2 * r + 1))
    if final:
        a("s_lshl_b32 s41, s37, 5")
        a("v_add_u32 v17, s41, v1")
        a("s_movk_i32 s42, 1280")
        a("v_mul_lo_u32 v17, v17, s42")
        a("v_lshl_add_u32 v17, v2, 3, v17")
        a("s_lshl_b32 s42, s38, 6")
        for g in range(4):
            a("buffer_store_dwordx2 %s, v17, s[28:31], s42 offen offset:%d" % (vr(144 + 2 * g, 2), g * 16))
    else:
        a("buffer_store_dwordx4 v[144:147], v3, s[24:27], s39 offen")
        a("buffer_store_dwordx4 v[148:151], v3, s[24:27], s39 offen offset:1024")
        a("v_mov_b32 v20, 0x3f803f80")
        a("v_mov_b32 v22, 0")
        a("v_mov_b32 v23, 0")
        for r in range(8):
            a("v_dot2_f32_bf16 v22, v%d, v20, v22" % (144 + r))
            a("v_dot2_f32_bf16 v23, v%d, v%d, v23" % (144 + r, 144 + r))
        a("s_nop 4")
        a("v_mov_b32 v24, v22")
        a("v_mov_b32 v25, v23")
        a("s_nop 1")
        a("v_permlane32_swap_b32 v24, v22")
        a("v_permlane32_swap_b32 v25, v23")
        a("s_nop 1")
        a("v_add_f32 v22, v22, v24")
        a("v_add_f32 v23, v23, v25")
        a("s_lshl_b32 s41, s37, 8")
        a("v_lshl_add_u32 v17, v1, 3, s41")
        a("s_lshl_b32 s42, s38, 14")
        a("buffer_store_dwordx2 v[22:23], v17, s[20:23], s42 offen")
    stamp(a, 6)
    stamp_flush(a, 7, 41)
    a.label("L_%s_end" % name)
    kernel_end(a, name, 256)
    return "; @launch kernel=%s grid=(%d,1,1) block=(256,1,1) lds=65536" % (name, NWG)


def gen_gu(a):
    name = "gu_kernel"
    NWG = 224
    DB = 12
    kernel_begin(a, name)
    a("s_load_dwordx2 s[4:5], s[0:1], 72")
    a("s_cmp_ge_u32 s2, %d" % NWG)
    a("s_cbranch_scc1 L_gu_end")
    a("s_and_b32 s6, s2, 7")
    a("s_lshr_b32 s7, s2, 3")
    a("s_mul_hi_u32 s8, s7, 0x%x" % ((1 << 32) // 7 + 1))
    a("s_mul_i32 s9, s8, 7")
    a("s_sub_u32 s9, s7, s9")
    a("s_lshr_b32 s7, s6, 1")
    a("s_lshl_b32 s7, s7, 2")
    a("s_add_u32 s8, s8, s7")
    a("s_and_b32 s7, s6, 1")
    a("s_mul_i32 s7, s7, 7")
    a("s_add_u32 s9, s9, s7")
    a("v_lshrrev_b32 v1, 6, v0")
    a("v_and_b32 v0, 63, v0")
    a("s_nop 0")
    a("v_readfirstlane_b32 s10, v1")
    a("v_and_b32 v1, 31, v0")
    a("v_lshrrev_b32 v2, 5, v0")
    a("v_lshlrev_b32 v3, 4, v0")
    a("v_add_u32 v4, 0x10000, v3")
    a("v_add_u32 v5, 0x20000, v3")
    a("s_waitcnt lgkmcnt(0)")
    srd_ws(a, 12, 4, OFF_X, 64 * 40 * 1024)
    srd_ws(a, 16, 4, OFF_WG, 6 * MB)
    srd_ws(a, 20, 4, OFF_ST, 20 * 2048 * 8)
    srd_ws(a, 24, 4, OFF_CS + 16384, 32768)
    srd_ws(a, 28, 4, OFF_H, 64 * 108 * 1024)
    a("s_lshl_b32 s11, s9, 2")
    a("s_add_u32 s11, s11, s10")
    a("s_lshl_b32 s33, s8, 2")
    a("s_add_u32 s33, s33, s10")
    a("s_mul_i32 s34, s33, %d" % (40 * 1024))
    a("s_lshl_b32 s35, s10, 10")
    a("s_mul_i32 s36, s11, %d" % (40 * 1024))
    a("v_add_u32 v6, s36, v3")
    a("v_add_u32 v7, 0x%x, v6" % (3 * MB))
    a("s_lshl_b32 s36, s33, 8")
    a("v_lshl_add_u32 v9, v1, 3, s36")
    a("s_lshl_b32 s36, s11, 7")
    a("v_lshl_add_u32 v10, v2, 4, s36")
    a("v_add_u32 v12, 0x4000, v10")
    a("s_lshl_b32 s36, s10, 7")
    a("v_lshl_add_u32 v16, v1, 2, s36")
    SBASE, STOUT, AF, CSB, ACC = 20, 18, 60, 96, 128
    AF = 20
    CSB = 68
    SBASE = 100
    SBASE = 100
    vCS = [(10, 10), (12, 12)]
    a("s_cmp_ge_u32 s11, 54")
    a("s_cbranch_scc1 L_gu_idle")
    a.vm = []
    astat_prologue(a, 4, 2, DB, 12, 16, [6, 7], 34, 35, 3)
    astat_loop(a, 4, 2, DB, 16, [6, 7], 3, AF, ACC, [True, True], 16, STOUT,
               astat_side(a, 20, 9, SBASE, 24, vCS, CSB, [True, True], 2, STOUT))
    a.vwait_all()
    a("v_lshlrev_b32 v17, 2, v1")
    for i in range(4):
        a("ds_read_b32 v%d, v17 offset:%d" % (100 + 2 * i, i * 128))
        a("ds_read_b32 v%d, v17 offset:%d" % (108 + 2 * i, 512 + i * 128))
    a("s_mul_i32 s37, s8, %d" % (4 * 108 * 1024))
    a("s_lshl_b32 s38, s11, 11")
    a("s_add_u32 s37, s37, s38")
    K1 = -2.0 * LOG2E * 0.7978845608028654
    K2 = K1 * 0.044715
    a("v_mov_b32 v116, %s" % fhex(K1))
    a("v_mov_b32 v118, %s" % fhex(K2))
    a("v_mov_b32 v120, 1.0")
    a("s_waitcnt lgkmcnt(0)")
    a("s_nop 7")
    BC = " op_sel_hi:[1,0]"
    BC3 = " op_sel_hi:[0,1,1]"
    for i in range(4):
        dg = ACC + (i * 2 + 0) * 16
        du = ACC + (i * 2 + 1) * 16
        csg, csu = CSB, CSB + 16
        ri, nm = vr(100 + 2 * i, 2), vr(108 + 2 * i, 2)
        T = 20
        for r in range(0, 16, 2):
            a("v_pk_mul_f32 %s, %s, %s%s" % (vr(dg + r, 2), vr(dg + r, 2), ri, BC))
            a("v_pk_mul_f32 %s, %s, %s%s" % (vr(du + r, 2), vr(du + r, 2), ri, BC))
        for r in range(0, 16, 2):
            a("v_pk_fma_f32 %s, %s, %s, %s%s" % (vr(dg + r, 2), nm, vr(csg + r, 2), vr(dg + r, 2), BC3))
            a("v_pk_fma_f32 %s, %s, %s, %s%s" % (vr(du + r, 2), nm, vr(csu + r, 2), vr(du + r, 2), BC3))
        for r in range(0, 16, 2):
            a("v_pk_mul_f32 %s, %s, %s" % (vr(T + r, 2), vr(dg + r, 2), vr(dg + r, 2)))
        for r in range(0, 16, 2):
            a("v_pk_fma_f32 %s, %s, %s, %s op_sel_hi:[1,0,0]" % (vr(T + r, 2), vr(T + r, 2), vr(118, 2), vr(116, 2)))
        for r in range(0, 16, 2):
            a("v_pk_mul_f32 %s, %s, %s" % (vr(T + r, 2), vr(T + r, 2), vr(dg + r, 2)))
        for r in range(16):
            a("v_exp_f32 v%d, v%d" % (T + r, T + r))
        for r in range(0, 16, 2):
            a("v_pk_mul_f32 %s, %s, %s" % (vr(dg + r, 2), vr(dg + r, 2), vr(du + r, 2)))
        for r in range(0, 16, 2):
            a("v_pk_add_f32 %s, %s, %s%s" % (vr(T + r, 2), vr(T + r, 2), vr(120, 2), BC))
        for r in range(16):
            a("v_rcp_f32 v%d, v%d" % (T + r, T + r))
        a("s_nop 0")
        for r in range(0, 16, 2):
            a("v_pk_mul_f32 %s, %s, %s" % (vr(T + r, 2), vr(T + r, 2), vr(dg + r, 2)))
        for r in range(8):
            a("v_cvt_pk_bf16_f32 v%d, v%d, v%d" % (dg + r, T + 2 * r, T + 2 * r + 1))
        a("s_add_u32 s42, s37, 0x%x" % (i * 108 * 1024))
        a("buffer_store_dwordx4 %s, v3, s[28:31], s42 offen" % vr(dg, 4))
        a("buffer_store_dwordx4 %s, v3, s[28:31], s42 offen offset:1024" % vr(dg + 4, 4))
    a("s_branch L_gu_end")
    a.label("L_gu_idle")
    a.vm = []
    astat_prologue(a, 4, 2, DB, 12, 16, [6, 7], 34, 35, 3, active=False)
    astat_loop(a, 4, 2, DB, 16, [6, 7], 3, AF, ACC, [True, True], 16, STOUT,
               astat_side(a, 20, 9, SBASE, 24, vCS, CSB, [True, True], 2, STOUT, active=False), active=False)
    a("s_waitcnt vmcnt(0) lgkmcnt(0)")
    a.label("L_gu_end")
    kernel_end(a, name, 256, agpr=DB * 8)
    return "; @launch kernel=%s grid=(%d,1,1) block=(256,1,1) lds=163840" % (name, NWG)


def main():
    a = Asm()
    l_prep = gen_prep(a)
    l_qkv = gen_qkv(a)
    l_att = gen_attn(a)
    l_wo = gen_proj(a, "wo_kernel", OFF_O, 40, OFF_WO, False)
    l_gu = gen_gu(a)
    l_dn = gen_proj(a, "down_kernel", OFF_H, 108, OFF_WD, False)
    l_dnf = gen_proj(a, "downf_kernel", OFF_H, 108, OFF_WD, True)
    launches = [l_prep, l_qkv, l_att, l_wo, l_gu, l_dn, l_qkv, l_att, l_wo, l_gu, l_dnf]
    out = []
    out += launches
    out.append('.amdgcn_target "amdgcn-amd-amdhsa--gfx950"')
    out.append(".text")
    out.append(a.text())
    out.append('.section .rodata,"a"')
    out.append(".p2align 6")
    for d in DESCS:
        out.append(".p2align 6" + d)
    sf = os.environ.get("STOREFLAGS", "")
    if sf:
        txt = "\n".join(out)
        import re
        txt = re.sub(r"(buffer_store_dword\w* [^\n]*)", lambda m: m.group(1) + " " + sf, txt)
        out = txt.split("\n")
    path = sys.argv[1] if len(sys.argv) > 1 else "cdna_kernels/%s.s" % NAME
    open(path, "w").write("\n".join(out) + "\n")


if __name__ == "__main__":
    main()
```

```python
import struct
import sys

NAME = "interleave_layers__mha_block__glu_gated_geglu__prompt"
MB = 1 << 20
OFF_WQKV = 0
OFF_WO = 4 * MB
OFF_WG = 6 * MB
OFF_WU = 9 * MB
OFF_WD = 12 * MB
OFF_CS = 15 * MB
OFF_X = 16 * MB
OFF_ST = 19 * MB
OFF_Q = 20 * MB
OFF_K = 24 * MB
OFF_V = 28 * MB
OFF_O = 32 * MB
OFF_H = 36 * MB
WS_SIZE = 268435456

LOG2E = 1.4426950408889634
QSCALE = LOG2E / (20.0 ** 0.5)


def f32bits(x):
    return struct.unpack("<I", struct.pack("<f", x))[0]


def fhex(x):
    return "0x%08x" % f32bits(x)


class Asm:
    def __init__(self):
        self.lines = []
        self.vm = []
        self.lab = 0

    def __call__(self, s):
        self.lines.append("    " + s)

    def label(self, name):
        self.lines.append(name + ":")

    def newlabel(self, p="L"):
        self.lab += 1
        return "%s_%d" % (p, self.lab)

    def raw(self, s):
        self.lines.append(s)

    def vissue(self, tag):
        self.vm.append(tag)

    def vwait(self, tag):
        if tag not in self.vm:
            return
        idx = len(self.vm) - 1 - self.vm[::-1].index(tag)
        n = len(self.vm) - 1 - idx
        if n <= 63:
            self("s_waitcnt vmcnt(%d)" % n)
        self.vm = self.vm[idx + 1:]

    def vwait_all(self):
        self("s_waitcnt vmcnt(0)")
        self.vm = []

    def text(self):
        return "\n".join(self.lines)


def vr(b, n):
    return "v[%d:%d]" % (b, b + n - 1)


def sr(b, n):
    return "s[%d:%d]" % (b, b + n - 1)


def kernel_begin(a, name):
    a.raw(".globl %s" % name)
    a.raw(".p2align 8")
    a.raw(".type %s,@function" % name)
    a.label(name)


DESCS = []


def kernel_end(a, name, vgpr, sgpr=102, agpr=0):
    a("s_endpgm")
    acc = (vgpr + 3) // 4 * 4
    if agpr:
        vgpr = acc + agpr
    DESCS.append("""
.amdhsa_kernel %s
  .amdhsa_next_free_vgpr %d
  .amdhsa_next_free_sgpr %d
  .amdhsa_accum_offset %d
  .amdhsa_group_segment_fixed_size 0
  .amdhsa_kernarg_size 80
  .amdhsa_user_sgpr_count 2
  .amdhsa_user_sgpr_kernarg_segment_ptr 1
  .amdhsa_system_sgpr_workgroup_id_x 1
.end_amdhsa_kernel""" % (name, vgpr, sgpr, acc))


def srd_ws(a, d, wsreg, off, size):
    a("s_add_u32 s%d, s%d, 0x%x" % (d, wsreg, off))
    a("s_addc_u32 s%d, s%d, 0" % (d + 1, wsreg + 1))
    a("s_and_b32 s%d, s%d, 0xffff" % (d + 1, d + 1))
    a("s_mov_b32 s%d, 0x%x" % (d + 2, size))
    a("s_mov_b32 s%d, 0x00020000" % (d + 3))


def srd_ptr(a, d, preg, size):
    a("s_mov_b32 s%d, s%d" % (d, preg))
    a("s_and_b32 s%d, s%d, 0xffff" % (d + 1, preg + 1))
    a("s_mov_b32 s%d, 0x%x" % (d + 2, size))
    a("s_mov_b32 s%d, 0x00020000" % (d + 3))


import os
STAMP = int(os.environ.get("STAMP", "0"))


def stamp(a, idx, sreg=90, real=False):
    if not STAMP:
        return
    a("s_memrealtime s[88:89]" if real else "s_memtime s[88:89]")
    a("s_waitcnt lgkmcnt(0)")
    a("s_mov_b32 s%d, s88" % (sreg + idx))


def stamp_flush(a, n, wgsel, sreg=90):
    if not STAMP:
        return
    lab = a.newlabel("L_st")
    a("s_cmp_lg_u32 s2, %d" % wgsel)
    a("s_cbranch_scc1 %s" % lab)
    a("s_load_dwordx2 s[80:81], s[0:1], 64")
    a("s_waitcnt lgkmcnt(0)")
    a("s_and_b32 s81, s81, 0xffff")
    a("s_mov_b32 s82, 256")
    a("s_mov_b32 s83, 0x00020000")
    a("v_mov_b32 v250, 0")
    for i in range(n):
        a("v_mov_b32 v251, s%d" % (sreg + i))
        a("buffer_store_dword v251, v250, s[80:83], 0 offen offset:%d" % (4 * i))
        a("s_nop 1")
    a.label(lab)


def bf16r(a, dst, src):
    a("v_cvt_pk_bf16_f32 v%d, v%d, v%d" % (dst, src, src))
    a("v_lshlrev_b32 v%d, 16, v%d" % (dst, dst))


WJ = [
    ("q", 6, 640 * 1920 * 2, 3840, 10, 15, OFF_WQKV, 40, 60),
    ("o", 8, 640 * 640 * 2, 1280, 10, 5, OFF_WO, 40, 20),
    ("g", 12, 640 * 1728 * 2, 3456, 10, 14, OFF_WG, 40, 54),
    ("u", 14, 640 * 1728 * 2, 3456, 10, 14, OFF_WU, 40, 54),
    ("d", 16, 1728 * 640 * 2, 1280, 27, 5, OFF_WD, 108, 20),
]
CJ = [("q", 6, 640 * 1920 * 2, 3840, 60, 0, 1920), ("g", 12, 640 * 1728 * 2, 3456, 54, 16384, 1728),
      ("u", 14, 640 * 1728 * 2, 3456, 54, 32768, 1728)]
N_CS = sum(c[4] for c in CJ)
N_W = sum(w[4] * w[5] for w in WJ)
WG_W0 = N_CS
WG_X0 = WG_W0 + N_W
WG_P0 = WG_X0 + 160
K0_WGS = WG_P0
RS = 272


def gen_prep(a):
    name = "prep_kernel"
    kernel_begin(a, name)
    a("s_load_dwordx16 s[4:19], s[0:1], 0")
    a("s_load_dwordx4 s[20:23], s[0:1], 64")
    a("v_lshrrev_b32 v1, 6, v0")
    a("v_mov_b32 v40, v0")
    a("v_and_b32 v0, 63, v0")
    a("s_nop 0")
    a("v_readfirstlane_b32 s24, v1")
    a("v_and_b32 v2, 31, v0")
    a("v_lshrrev_b32 v3, 5, v0")
    a("v_lshlrev_b32 v4, 4, v0")
    a("v_and_b32 v41, 15, v40")
    a("v_lshrrev_b32 v42, 4, v40")
    a("s_waitcnt lgkmcnt(0)")
    srd_ws(a, 48, 22, 0, WS_SIZE)
    a("s_cmp_ge_u32 s2, %d" % K0_WGS)
    a("s_cbranch_scc1 L_prep_end")
    a("s_cmp_ge_u32 s2, %d" % WG_P0)
    a("s_cbranch_scc1 L_prep_pad")
    a("s_cmp_ge_u32 s2, %d" % WG_X0)
    a("s_cbranch_scc1 L_prep_x")
    a("s_cmp_lt_u32 s2, %d" % WG_W0)
    a("s_cbranch_scc1 L_prep_cs")
    j0 = WG_W0
    for (lab, ptr, size, ld, nkb, nnb, dst, KS, nct) in WJ:
        nxt = j0 + nkb * nnb
        a("s_cmp_ge_u32 s2, %d" % nxt)
        a("s_cbranch_scc1 L_prep_n%s" % lab)
        srd_ptr(a, 28, ptr, size)
        a("s_mov_b32 s32, %d" % ld)
        a("s_sub_u32 s34, s2, %d" % j0)
        a("s_mul_hi_u32 s37, s34, 0x%x" % ((1 << 32) // nnb + 1))
        a("s_mul_i32 s38, s37, %d" % nnb)
        a("s_sub_u32 s38, s34, s38")
        a("s_mov_b32 s35, 0x%x" % dst)
        a("s_mov_b32 s36, %d" % KS)
        a("s_mov_b32 s33, %d" % nct)
        a("s_branch L_prep_w")
        a.label("L_prep_n%s" % lab)
        j0 = nxt
    a.label("L_prep_w")
    a("s_lshl_b32 s41, s37, 6")
    a("v_add_u32 v5, s41, v42")
    a("v_mul_lo_u32 v5, v5, s32")
    a("s_lshl_b32 s41, s38, 8")
    a("v_lshl_add_u32 v6, v41, 4, s41")
    a("v_add_u32 v5, v5, v6")
    for i in range(4):
        a("s_mul_i32 s42, s32, %d" % (16 * i))
        a("buffer_load_dwordx4 %s, v5, s[28:31], s42 offen" % vr(16 + 4 * i, 4))
    a("v_mul_u32_u24 v6, %d, v42" % RS)
    a("v_lshl_add_u32 v6, v41, 4, v6")
    a("v_bfe_u32 v7, v0, 2, 2")
    a("v_lshl_add_u32 v7, v3, 2, v7")
    a("v_mul_u32_u24 v7, %d, v7" % RS)
    a("v_and_b32 v8, 3, v0")
    a("v_lshl_add_u32 v7, v8, 3, v7")
    a("v_bfe_u32 v8, v0, 4, 1")
    a("v_lshl_add_u32 v7, v8, 5, v7")
    a("s_lshl_b32 s41, s24, 6")
    a("v_add_u32 v7, s41, v7")
    a("s_waitcnt vmcnt(0)")
    for i in range(4):
        a("ds_write_b128 v6, %s offset:%d" % (vr(16 + 4 * i, 4), 16 * i * RS))
    a("s_waitcnt lgkmcnt(0)")
    a("s_barrier")
    for kt in range(2):
        for sx in range(2):
            for g in range(2):
                a("ds_read_b64_tr_b16 %s, v7 offset:%d" % (vr(16 + (kt * 2 + sx) * 4 + 2 * g, 2), (32 * kt + 16 * sx + 8 * g) * RS))
    a("s_lshl_b32 s43, s38, 2")
    a("s_add_u32 s43, s43, s24")
    a("s_cmp_ge_u32 s43, s33")
    a("s_cbranch_scc1 L_prep_end")
    a("s_mul_i32 s43, s43, s36")
    a("s_lshl_b32 s44, s37, 2")
    a("s_add_u32 s43, s43, s44")
    a("s_lshl_b32 s43, s43, 10")
    a("s_add_u32 s43, s43, s35")
    a("s_waitcnt lgkmcnt(0)")
    for f in range(4):
        a("buffer_store_dwordx4 %s, v4, s[48:51], s43 offen offset:%d" % (vr(16 + 4 * f, 4), f * 1024))
    a("s_branch L_prep_end")

    a.label("L_prep_pad")
    a("s_sub_u32 s34, s2, %d" % WG_P0)
    a("s_lshl_b32 s34, s34, 2")
    a("s_add_u32 s34, s34, s24")
    a("s_lshl_b32 s34, s34, 11")
    for i in range(4):
        a("v_mov_b32 v%d, 0" % (16 + i))
    a("v_cmp_eq_u32 vcc, 20, v2")
    a("v_cmp_eq_u32 s[44:45], 24, v2")
    a("s_or_b64 vcc, vcc, s[44:45]")
    a("v_mov_b32 v24, 0x3f803f80")
    a("s_nop 1")
    for i in range(4):
        a("v_cndmask_b32 v%d, 0, v24, vcc" % (20 + i))
    a("s_add_u32 s35, s34, 0x%x" % OFF_Q)
    a("buffer_store_dwordx4 v[16:19], v4, s[48:51], s35 offen offset:1024")
    a("s_add_u32 s35, s34, 0x%x" % OFF_K)
    a("buffer_store_dwordx4 v[16:19], v4, s[48:51], s35 offen offset:1024")
    a("s_add_u32 s35, s34, 0x%x" % OFF_V)
    a("buffer_store_dwordx4 v[20:23], v4, s[48:51], s35 offen")
    a("buffer_store_dwordx4 v[20:23], v4, s[48:51], s35 offen offset:1024")
    a("s_branch L_prep_end")

    a.label("L_prep_x")
    srd_ptr(a, 28, 4, 2048 * 640 * 2)
    a("s_sub_u32 s34, s2, %d" % WG_X0)
    a("s_lshl_b32 s34, s34, 2")
    a("s_add_u32 s34, s34, s24")
    a("s_mul_hi_u32 s37, s34, 0x%x" % ((1 << 32) // 10 + 1))
    a("s_mul_i32 s38, s37, 10")
    a("s_sub_u32 s38, s34, s38")
    a("s_lshl_b32 s39, s37, 5")
    a("v_add_u32 v5, s39, v2")
    a("s_movk_i32 s32, 1280")
    a("v_mul_lo_u32 v6, v5, s32")
    a("v_lshl_add_u32 v6, v3, 3, v6")
    a("s_lshl_b32 s41, s38, 7")
    for kt in range(2):
        for sx in range(2):
            for g in range(2):
                reg = 16 + (kt * 2 + sx) * 4 + g * 2
                a("buffer_load_dwordx2 %s, v6, s[28:31], s41 offen offset:%d" % (vr(reg, 2), kt * 64 + 32 * sx + 16 * g))
    a("s_mul_i32 s43, s37, 40")
    a("s_lshl_b32 s44, s38, 2")
    a("s_add_u32 s43, s43, s44")
    a("s_lshl_b32 s43, s43, 10")
    a("s_add_u32 s43, s43, 0x%x" % OFF_X)
    a("v_mov_b32 v9, 0x3f803f80")
    a("s_waitcnt vmcnt(0)")
    for f in range(4):
        a("buffer_store_dwordx4 %s, v4, s[48:51], s43 offen offset:%d" % (vr(16 + 4 * f, 4), f * 1024))
    for kt in range(2):
        sreg, qreg = 44 + 2 * kt, 45 + 2 * kt
        a("v_mov_b32 v%d, 0" % sreg)
        a("v_mov_b32 v%d, 0" % qreg)
        for i in range(8):
            r = 16 + kt * 8 + i
            a("v_dot2_f32_bf16 v%d, v%d, v9, v%d" % (sreg, r, sreg))
            a("v_dot2_f32_bf16 v%d, v%d, v%d, v%d" % (qreg, r, r, qreg))
    a("s_nop 4")
    for i in range(4):
        a("v_mov_b32 v%d, v%d" % (48 + i, 44 + i))
    a("s_nop 1")
    for i in range(4):
        a("v_permlane32_swap_b32 v%d, v%d" % (48 + i, 44 + i))
    a("s_nop 1")
    for i in range(4):
        a("v_add_f32 v%d, v%d, v%d" % (44 + i, 44 + i, 48 + i))
    a("v_lshlrev_b32 v7, 3, v5")
    a("s_lshl_b32 s44, s38, 15")
    a("s_add_u32 s44, s44, 0x%x" % OFF_ST)
    a("s_add_u32 s45, s44, 16384")
    a("buffer_store_dwordx2 v[44:45], v7, s[48:51], s44 offen")
    a("buffer_store_dwordx2 v[46:47], v7, s[48:51], s45 offen")
    a("s_branch L_prep_end")

    a.label("L_prep_cs")
    j0 = 0
    for (lab, ptr, size, ld, nnb, o, ncol) in CJ:
        nxt = j0 + nnb
        a("s_cmp_ge_u32 s2, %d" % nxt)
        a("s_cbranch_scc1 L_cs_n%s" % lab)
        srd_ptr(a, 28, ptr, size)
        a("s_mov_b32 s32, %d" % ld)
        a("s_sub_u32 s38, s2, %d" % j0)
        srd_ws(a, 52, 22, OFF_CS + o, ncol * 4)
        a("s_branch L_cs_w")
        a.label("L_cs_n%s" % lab)
        j0 = nxt
    a.label("L_cs_w")
    a("v_and_b32 v41, 3, v40")
    a("v_lshrrev_b32 v42, 2, v40")
    a("v_mul_lo_u32 v5, v42, s32")
    a("s_lshl_b32 s41, s38, 6")
    a("v_lshl_add_u32 v6, v41, 4, s41")
    a("v_add_u32 v5, v5, v6")
    for i in range(10):
        a("s_mul_i32 s42, s32, %d" % (64 * i))
        a("buffer_load_dwordx4 %s, v5, s[28:31], s42 offen" % vr(48 + 4 * i, 4))
    for e in range(8):
        a("v_mov_b32 v%d, 0" % (16 + e))
    for i in range(10):
        a("s_waitcnt vmcnt(%d)" % (9 - i))
        for d in range(4):
            r = 48 + 4 * i + d
            a("v_lshlrev_b32 v24, 16, v%d" % r)
            a("v_and_b32 v25, 0xffff0000, v%d" % r)
            a("v_add_f32 v%d, v%d, v24" % (16 + 2 * d, 16 + 2 * d))
            a("v_add_f32 v%d, v%d, v25" % (17 + 2 * d, 17 + 2 * d))
    a("v_lshlrev_b32 v6, 7, v42")
    a("v_lshl_add_u32 v6, v41, 5, v6")
    a("ds_write_b128 v6, v[16:19]")
    a("ds_write_b128 v6, v[20:23] offset:16")
    a("s_waitcnt lgkmcnt(0)")
    a("s_barrier")
    a("s_cmp_ge_u32 s24, 1")
    a("s_cbranch_scc1 L_prep_end")
    a("v_lshlrev_b32 v6, 2, v2")
    a("v_lshl_add_u32 v6, v3, 12, v6")
    for i in range(32):
        a("ds_read_b32 v%d, v6 offset:%d" % (64 + i, i * 128))
    a("s_waitcnt lgkmcnt(0)")
    for i in range(1, 32):
        a("v_add_f32 v64, v64, v%d" % (64 + i))
    a("v_mov_b32 v65, v64")
    a("s_nop 1")
    a("v_permlane32_swap_b32 v65, v64")
    a("s_nop 1")
    a("v_add_f32 v64, v64, v65")
    a("v_lshlrev_b32 v6, 2, v2")
    a("s_lshl_b32 s41, s38, 7")
    a("buffer_store_dword v64, v6, s[52:55], s41 offen")
    a.label("L_prep_end")
    kernel_end(a, name, 128)
    return "; @launch kernel=%s grid=(%d,1,1) block=(256,1,1) lds=%d" % (name, K0_WGS, 64 * RS)


DEPTH = int(__import__("os").environ.get("DEPTH", "8"))


def kloop(a, KS, srdA, srdB, vA, vB, sOff, stage, acc, swapped, tail=None, stampf=None):
    def loads(ks):
        slot = stage + (ks % DEPTH) * 16
        if ks % 4 == 0:
            a("s_mov_b32 s%d, 0x%x" % (sOff, (ks // 4) * 4096))
        imm = (ks % 4) * 1024
        for i in range(2):
            a("buffer_load_dwordx4 %s, v%d, %s, s%d offen offset:%d" % (vr(slot + 4 * i, 4), vA[i], sr(srdA, 4), sOff, imm))
            a.vissue(("k", ks))
        for j in range(2):
            a("buffer_load_dwordx4 %s, v%d, %s, s%d offen offset:%d" % (vr(slot + 8 + 4 * j, 4), vB[j], sr(srdB, 4), sOff, imm))
            a.vissue(("k", ks))

    for ks in range(min(DEPTH, KS)):
        loads(ks)
    ntail = 0
    for ks in range(KS):
        a.vwait(("k", ks))
        if stampf and ks in (0, 8, 16):
            stampf(a, 1 + ks // 8)
        slot = stage + (ks % DEPTH) * 16
        for i in range(2):
            for j in range(2):
                d = acc + (i * 2 + j) * 16
                A = vr(slot + 4 * i, 4)
                B = vr(slot + 8 + 4 * j, 4)
                c = "0" if ks == 0 else vr(d, 16)
                if swapped:
                    a("v_mfma_f32_32x32x16_bf16 %s, %s, %s, %s" % (vr(d, 16), B, A, c))
                else:
                    a("v_mfma_f32_32x32x16_bf16 %s, %s, %s, %s" % (vr(d, 16), A, B, c))
        if ks + DEPTH < KS:
            loads(ks + DEPTH)
        elif tail is not None:
            tail(ntail, slot)
            ntail += 1


def stats_tail(a, srdST, vTok, srdCS, vCS, sTmp, ncs_tiles, cs_swapped, plan):
    def tail(i, slot):
        if i < 5:
            for q in range(8):
                idx = i * 8 + q
                rt, ct = idx // 20, idx % 20
                a("s_mov_b32 s%d, 0x%x" % (sTmp, ct * 16384 + rt * 256))
                a("buffer_load_dwordx2 %s, v%d, %s, s%d offen" % (vr(slot + 2 * q, 2), vTok, sr(srdST, 4), sTmp))
                a.vissue(("st", idx))
                plan[("st", rt, ct)] = slot + 2 * q
        elif i - 5 < ncs_tiles:
            j = i - 5
            if cs_swapped:
                for g in range(4):
                    a("buffer_load_dwordx4 %s, v%d, %s, 0 offen offset:%d" % (vr(slot + 4 * g, 4), vCS[j], sr(srdCS, 4), g * 32))
                    a.vissue(("cs", j))
                plan[("cs", j)] = slot
            else:
                a("buffer_load_dword v%d, v%d, %s, 0 offen" % (slot, vCS[j], sr(srdCS, 4)))
                a.vissue(("cs", j))
                plan[("cs", j)] = slot
    return tail


def stats_finalize(a, plan, out, t):
    for rt in range(2):
        s0 = plan[("st", rt, 0)]
        for ct in range(1, 20):
            r = plan[("st", rt, ct)]
            a("v_add_f32 v%d, v%d, v%d" % (s0, s0, r))
            a("v_add_f32 v%d, v%d, v%d" % (s0 + 1, s0 + 1, r + 1))
        mean, var = t, t + 1
        a("v_mul_f32 v%d, %s, v%d" % (mean, fhex(1.0 / 640), s0))
        a("v_mul_f32 v%d, %s, v%d" % (var, fhex(1.0 / 640), s0 + 1))
        a("v_fma_f32 v%d, -v%d, v%d, v%d" % (var, mean, mean, var))
        a("v_max_f32 v%d, 0, v%d" % (var, var))
        bf16r(a, mean, mean)
        bf16r(a, var, var)
        a("v_add_f32 v%d, %s, v%d" % (var, fhex(1e-5), var))
        bf16r(a, var, var)
        a("v_sqrt_f32 v%d, v%d" % (var, var))
        a("s_nop 0")
        bf16r(a, var, var)
        a("v_rcp_f32 v%d, v%d" % (out + 2 * rt, var))
        a("s_nop 0")
        a("v_mul_f32 v%d, v%d, v%d" % (out + 2 * rt + 1, mean, out + 2 * rt))
        a("v_sub_f32 v%d, 0, v%d" % (out + 2 * rt + 1, out + 2 * rt + 1))


def ar(b, n):
    return "a[%d:%d]" % (b, b + n - 1)


def adma1(a, NRT, srdA, sAoff, sWave, vLane16, g, i):
    per = 10 * NRT // 4
    f0 = 4 * (g * per + i)
    a("s_add_u32 s42, s%d, 0x%x" % (sWave, f0 * 1024))
    a("s_mov_b32 m0, s42")
    a("s_add_u32 s43, s%d, 0x%x" % (sAoff, (f0 // NRT) * 1024))
    a("buffer_load_dwordx4 v%d, %s, s43 offen lds" % (vLane16, sr(srdA, 4)))
    a.vissue(("A", g))


def astat_prologue(a, NRT, TN, DB, srdA, srdB, vB, sAoff, sWave, vLane16, active=True):
    per = 10 * NRT // 4
    for i in range(per):
        adma1(a, NRT, srdA, sAoff, sWave, vLane16, 0, i)
        if active and i < DB:
            bload(a, i, TN, DB, srdB, vB)
    if active:
        for ks in range(per, DB):
            bload(a, ks, TN, DB, srdB, vB)
    a.adma_args = (NRT, srdA, sAoff, sWave, vLane16)


def astat_adma_in_loop(a, ks):
    NRT = a.adma_args[0]
    per = 10 * NRT // 4
    g = 1 + ks // 5
    if g > 3:
        return
    n = (per + 4) // 5
    for i in range((ks % 5) * n, min(per, (ks % 5 + 1) * n)):
        adma1(a, *a.adma_args, g, i)


def astat_side(a, srdST, vTok, SBASE, srdCS, vCS, CSB, cs_swapped, TN, STOUT, active=True):
    def cb(ks):
        if ks in (7, 9, 11, 13, 15):
            b = (ks - 7) // 2
            a.vwait(("st", b))
            sl = SBASE + (b % 3) * 8
            for q in range(4):
                if b == 0 and q == 0:
                    a("v_mov_b32 v%d, v%d" % (SBASE + 24, sl))
                    a("v_mov_b32 v%d, v%d" % (SBASE + 25, sl + 1))
                else:
                    a("v_add_f32 v%d, v%d, v%d" % (SBASE + 24, SBASE + 24, sl + 2 * q))
                    a("v_add_f32 v%d, v%d, v%d" % (SBASE + 25, SBASE + 25, sl + 2 * q + 1))
        if ks in (1, 3, 5, 7, 9):
            b = (ks - 1) // 2
            sl = SBASE + (b % 3) * 8
            for q in range(4):
                a("s_mov_b32 s41, 0x%x" % ((b * 4 + q) * 16384))
                a("buffer_load_dwordx2 %s, v%d, %s, s41 offen" % (vr(sl + 2 * q, 2), vTok, sr(srdST, 4)))
                a.vissue(("st", b))
        if ks == 6 and active:
            for j in range(TN):
                if cs_swapped[j]:
                    for g in range(4):
                        a("buffer_load_dwordx4 %s, v%d, %s, 0 offen offset:%d" % (vr(CSB + 16 * j + 4 * g, 4), vCS[j][0], sr(srdCS, 4), g * 32))
                        a.vissue("cs")
                else:
                    a("buffer_load_dword v%d, v%d, %s, 0 offen" % (CSB + 16 * j, vCS[j][1], sr(srdCS, 4)))
                    a.vissue("cs")
        if ks == 17:
            astat_stats(a, SBASE, STOUT)
    return cb


def bload(a, ks, TN, DB, srdB, vB):
    slot = (ks % DB) * TN * 4
    if ks % 4 == 0:
        a("s_mov_b32 s40, 0x%x" % ((ks // 4) * 4096))
    for j in range(TN):
        a("buffer_load_dwordx4 %s, v%d, %s, s40 offen offset:%d" % (ar(slot + 4 * j, 4), vB[j], sr(srdB, 4), (ks % 4) * 1024))
        a.vissue(("B", ks))


def astat_stats(a, SBASE, out):
    mean, var = SBASE + 2, SBASE + 3
    a("v_mul_f32 v%d, %s, v%d" % (mean, fhex(1.0 / 640), SBASE + 24))
    a("v_mul_f32 v%d, %s, v%d" % (var, fhex(1.0 / 640), SBASE + 25))
    a("v_fma_f32 v%d, -v%d, v%d, v%d" % (var, mean, mean, var))
    a("v_max_f32 v%d, 0, v%d" % (var, var))
    bf16r(a, mean, mean)
    bf16r(a, var, var)
    a("v_add_f32 v%d, %s, v%d" % (var, fhex(1e-5), var))
    bf16r(a, var, var)
    a("v_sqrt_f32 v%d, v%d" % (var, var))
    a("s_nop 0")
    bf16r(a, var, var)
    a("v_rcp_f32 v%d, v%d" % (out, var))
    a("s_nop 0")
    a("v_mul_f32 v%d, v%d, v%d" % (out + 1, mean, out))
    a("v_sub_f32 v%d, 0, v%d" % (out + 1, out + 1))


def astat_loop(a, NRT, TN, DB, srdB, vB, vLane16, AF, acc, swapped, vStW, STOUT, side, active=True):
    KS = 40

    def aread(ks):
        base = AF + (ks % 3) * NRT * 4
        for i in range(NRT):
            off = (ks * NRT + i) * 1024
            if off < 65536:
                a("ds_read_b128 %s, v%d offset:%d" % (vr(base + 4 * i, 4), vLane16, off))
            elif off < 131072:
                a("ds_read_b128 %s, v%d offset:%d" % (vr(base + 4 * i, 4), vLane16 + 1, off - 65536))
            else:
                a("ds_read_b128 %s, v%d offset:%d" % (vr(base + 4 * i, 4), vLane16 + 2, off - 131072))

    for ks in range(KS):
        if ks % 10 == 0:
            a.vwait(("A", ks // 10))
            a("s_barrier")
            stamp(a, 2 + ks // 10)
            if ks == 20:
                a("ds_write_b32 v%d, v%d" % (vStW, STOUT))
                a("ds_write_b32 v%d, v%d offset:%d" % (vStW, STOUT + 1, NRT * 128))
                a("s_waitcnt lgkmcnt(0)")
            if active:
                aread(ks)
                aread(ks + 1)
        if not active:
            astat_adma_in_loop(a, ks)
            side(ks)
            continue
        if ks % 10 < 8:
            aread(ks + 2)
        nout = min(2, 9 - ks % 10) * NRT
        a("s_waitcnt lgkmcnt(%d)" % nout)
        a.vwait(("B", ks))
        base = AF + (ks % 3) * NRT * 4
        slot = (ks % DB) * TN * 4
        for j in range(TN):
            for i in range(NRT):
                d = acc + (i * TN + j) * 16
                A = vr(base + 4 * i, 4)
                B = ar(slot + 4 * j, 4)
                c = "0" if ks == 0 else vr(d, 16)
                if swapped[j]:
                    a("v_mfma_f32_32x32x16_bf16 %s, %s, %s, %s" % (vr(d, 16), B, A, c))
                else:
                    a("v_mfma_f32_32x32x16_bf16 %s, %s, %s, %s" % (vr(d, 16), A, B, c))
        astat_adma_in_loop(a, ks)
        if ks + DB < KS:
            bload(a, ks + DB, TN, DB, srdB, vB)
        side(ks)


def gen_qkv(a):
    name = "qkv_kernel"
    NWG = 240
    DB = int(os.environ.get("DBQ", "16"))
    kernel_begin(a, name)
    a("s_load_dwordx2 s[4:5], s[0:1], 72")
    a("s_cmp_ge_u32 s2, %d" % NWG)
    a("s_cbranch_scc1 L_qkv_end")
    stamp(a, 0)
    a("s_and_b32 s6, s2, 7")
    a("s_lshr_b32 s7, s2, 3")
    a("s_mul_hi_u32 s8, s7, 0x%x" % ((1 << 32) // 15 + 1))
    a("s_mul_i32 s9, s8, 15")
    a("s_sub_u32 s9, s7, s9")
    a("s_lshl_b32 s6, s6, 1")
    a("s_add_u32 s8, s8, s6")
    a("v_lshrrev_b32 v1, 6, v0")
    a("v_and_b32 v0, 63, v0")
    a("s_nop 0")
    a("v_readfirstlane_b32 s10, v1")
    a("v_and_b32 v1, 31, v0")
    a("v_lshrrev_b32 v2, 5, v0")
    a("v_lshlrev_b32 v3, 4, v0")
    a("v_add_u32 v4, 0x10000, v3")
    a("v_add_u32 v5, 0x20000, v3")
    a("s_waitcnt lgkmcnt(0)")
    srd_ws(a, 12, 4, OFF_X, 64 * 40 * 1024)
    srd_ws(a, 16, 4, OFF_WQKV, 60 * 40 * 1024)
    srd_ws(a, 20, 4, OFF_ST, 20 * 2048 * 8)
    srd_ws(a, 24, 4, OFF_CS, 1920 * 4)
    srd_ws(a, 28, 4, OFF_Q, 12 * MB)
    a("s_lshl_b32 s11, s9, 2")
    a("s_add_u32 s11, s11, s10")
    a("s_lshl_b32 s33, s8, 2")
    a("s_add_u32 s33, s33, s10")
    a("s_mul_i32 s34, s33, %d" % (40 * 1024))
    a("s_lshl_b32 s35, s10, 10")
    a("s_mul_i32 s36, s11, %d" % (40 * 1024))
    a("v_add_u32 v6, s36, v3")
    a("s_lshl_b32 s36, s33, 8")
    a("v_lshl_add_u32 v9, v1, 3, s36")
    a("s_lshl_b32 s36, s11, 7")
    a("v_lshl_add_u32 v10, v2, 4, s36")
    a("v_lshl_add_u32 v11, v1, 2, s36")
    a("s_lshl_b32 s36, s10, 7")
    a("v_lshl_add_u32 v16, v1, 2, s36")
    a("s_mul_hi_u32 s44, s11, 0x%x" % ((1 << 32) // 20 + 1))
    a("s_mul_i32 s45, s44, 20")
    a("s_sub_u32 s45, s11, s45")
    a("s_lshl_b32 s45, s45, 5")
    a("s_lshl_b32 s46, s44, 22")
    a("s_mul_i32 s47, s8, %d" % (4 * 1280))
    a("s_add_u32 s46, s46, s47")
    STOUT, AF, CSB, SBASE, ACC = 18, 20, 68, 100, 128
    a("s_cmp_eq_u32 s44, 2")
    a("s_cbranch_scc1 L_qkv_v")
    for path, sw in (("qk", [True]), ("v", [False])):
        a.label("L_qkv_" + path)
        a.vm = []
        astat_prologue(a, 4, 1, DB, 12, 16, [6], 34, 35, 3)
        stamp(a, 1)
        astat_loop(a, 4, 1, DB, 16, [6], 3, AF, ACC, sw, 16, STOUT,
                   astat_side(a, 20, 9, SBASE, 24, [(10, 11)], CSB, sw, 1, STOUT))
        a.vwait_all()
        stamp(a, 6)
        if sw[0]:
            a("v_lshlrev_b32 v17, 2, v1")
            for i in range(4):
                a("ds_read_b32 v%d, v17 offset:%d" % (100 + i, i * 128))
                a("ds_read_b32 v%d, v17 offset:%d" % (104 + i, 512 + i * 128))
            a("s_cmp_eq_u32 s44, 0")
            a("s_cselect_b32 s48, %s, 1.0" % fhex(QSCALE))
            a("v_lshlrev_b32 v24, 4, v1")
            for g in range(4):
                a("s_add_u32 s49, s45, %d" % (8 * g))
                a("v_lshl_add_u32 v25, v2, 2, s49")
                a("v_mul_u32_u24 v26, 3277, v25")
                a("v_lshrrev_b32 v26, 16, v26")
                a("v_mul_u32_u24 v27, 20, v26")
                a("v_sub_u32 v27, v25, v27")
                a("v_lshrrev_b32 v27, 2, v27")
                a("v_mul_u32_u24 v28, 0x14000, v26")
                a("v_and_b32 v29, 1, v27")
                a("v_lshl_add_u32 v30, v29, 9, v24")
                a("v_bfe_u32 v29, v27, 1, 1")
                a("v_lshl_add_u32 v30, v29, 3, v30")
                a("v_lshrrev_b32 v29, 1, v24")
                a("v_add_u32 v29, 1024, v29")
                a("v_cmp_eq_u32 vcc, 4, v27")
                a("s_nop 1")
                a("v_cndmask_b32 v30, v30, v29, vcc")
                a("v_add_u32 v%d, v28, v30" % (20 + g))
            a("s_waitcnt lgkmcnt(0)")
            for i in range(4):
                d = ACC + i * 16
                a("v_mul_f32 v56, s48, v%d" % (100 + i))
                a("v_mul_f32 v57, s48, v%d" % (104 + i))
                for r in range(16):
                    a("v_mul_f32 v%d, v%d, v56" % (d + r, d + r))
                    a("v_fma_f32 v%d, v57, v%d, v%d" % (d + r, CSB + r, d + r))
                for r in range(8):
                    a("v_cvt_pk_bf16_f32 v%d, v%d, v%d" % (d + r, d + 2 * r, d + 2 * r + 1))
                a("s_add_u32 s49, s46, %d" % (i * 1280))
                for g in range(4):
                    a("buffer_store_dwordx2 %s, v%d, s[28:31], s49 offen" % (vr(d + 2 * g, 2), 20 + g))
        else:
            a("v_add_u32 v25, s45, v1")
            a("v_mul_u32_u24 v26, 3277, v25")
            a("v_lshrrev_b32 v26, 16, v26")
            a("v_mul_u32_u24 v27, 20, v26")
            a("v_sub_u32 v27, v25, v27")
            a("v_mul_u32_u24 v28, 0x14000, v26")
            a("v_lshl_add_u32 v28, v27, 4, v28")
            a("v_mul_u32_u24 v29, 320, v2")
            a("v_add_u32 v20, v28, v29")
            a("v_lshlrev_b32 v17, 4, v2")
            for i in range(4):
                for g in range(4):
                    a("ds_read_b128 %s, v17 offset:%d" % (vr(24 + 4 * g, 4), i * 128 + g * 32))
                    a("ds_read_b128 %s, v17 offset:%d" % (vr(40 + 4 * g, 4), 512 + i * 128 + g * 32))
                a("s_waitcnt lgkmcnt(0)")
                d = ACC + i * 16
                for r in range(16):
                    a("v_mul_f32 v%d, v%d, v%d" % (d + r, d + r, 24 + r))
                    a("v_fma_f32 v%d, v%d, v%d, v%d" % (d + r, 40 + r, CSB, d + r))
                for r in range(8):
                    a("v_cvt_pk_bf16_f32 v%d, v%d, v%d" % (d + r, d + 2 * r, d + 2 * r + 1))
                a("s_add_u32 s49, s46, %d" % (i * 1280))
                a("buffer_store_dwordx4 %s, v20, s[28:31], s49 offen" % vr(d, 4))
                a("buffer_store_dwordx4 %s, v20, s[28:31], s49 offen offset:640" % vr(d + 4, 4))
        stamp(a, 7)
        stamp_flush(a, 8, 41)
        a("s_branch L_qkv_end")
    a.label("L_qkv_end")
    kernel_end(a, name, 256, agpr=DB * 4)
    return "; @launch kernel=%s grid=(%d,1,1) block=(256,1,1) lds=163840" % (name, NWG)


def gen_attn(a):
    name = "attn_kernel"
    kernel_begin(a, name)
    a("s_load_dwordx2 s[4:5], s[0:1], 72")
    a("s_cmp_ge_u32 s2, 256")
    a("s_cbranch_scc1 L_att_end")
    stamp(a, 0)
    a("s_and_b32 s6, s2, 31")
    a("s_lshr_b32 s7, s2, 5")
    a("v_lshrrev_b32 v1, 6, v0")
    a("s_nop 0")
    a("v_readfirstlane_b32 s8, v1")
    a("v_and_b32 v2, 63, v0")
    a("v_lshlrev_b32 v3, 4, v2")
    a("s_waitcnt lgkmcnt(0)")
    srd_ws(a, 12, 4, OFF_Q, 4 * MB)
    srd_ws(a, 16, 4, OFF_K, 4 * MB)
    srd_ws(a, 20, 4, OFF_V, 4 * MB)
    srd_ws(a, 24, 4, OFF_O, 4 * MB)
    a("s_mul_i32 s9, s6, 81920")
    a("s_lshl_b32 s10, s7, 3")
    a("s_add_u32 s10, s10, s8")
    a("s_mul_i32 s11, s10, 1280")
    a("s_add_u32 s11, s11, s9")
    QF = 8
    NEGM = 16
    SS = 32
    PK = 80
    OA = 96
    KF = 112
    VF = 144
    MX = 160
    VBASE = 81920
    a("s_mov_b32 s40, -1")
    a("s_mov_b32 s41, 0")
    a("s_mov_b32 s42, 0x000fffff")
    a("s_mov_b32 s43, 0x000fffff")
    a.vm = []
    for r in range(4, 8):
        a("v_mov_b32 v%d, 0" % (QF + r))
    a("v_lshlrev_b32 v4, 3, v2")
    a("buffer_load_dwordx4 %s, v3, s[12:15], s11 offen" % vr(QF, 4))
    a("s_mov_b64 exec, s[40:41]")
    a("buffer_load_dwordx2 %s, v4, s[12:15], s11 offen offset:1024" % vr(QF + 4, 2))
    a("s_mov_b64 exec, -1")
    a.vissue("q")
    a.vissue("q")
    a("s_lshl_b32 s33, s8, 10")
    a("s_add_u32 s34, s9, s33")

    def dma(srd, goff, loff, tag):
        a("s_add_u32 s35, s33, 0x%x" % loff)
        a("s_mov_b32 m0, s35")
        a("s_add_u32 s36, s34, 0x%x" % goff)
        a("buffer_load_dwordx4 v3, %s, s36 offen lds" % sr(srd, 4))
        a.vissue(tag)

    for i in range(10):
        dma(16, i * 8192, i * 8192, ("K", i))
    for i in range(10):
        dma(20, i * 8192, VBASE + i * 8192, ("V", i))
    a("v_mov_b32 v%d, 0xff800000" % MX)
    a("v_mov_b32 v%d, 0xff800000" % (MX + 1))
    a("v_mov_b32 v6, v3")
    a("v_add_u32 v5, %d, v3" % (32 * 1280))
    a("v_add_u32 v1, %d, v4" % (32 * 1280))
    a("v_and_b32 v7, 31, v2")
    a("v_lshrrev_b32 v%d, 5, v2" % (MX + 2))
    a("v_mul_u32_u24 v%d, 320, v%d" % (MX + 2, MX + 2))
    a("v_lshl_add_u32 v%d, v7, 4, v%d" % (MX + 2, MX + 2))
    a("v_add_u32 v%d, %d, v%d" % (MX + 2, VBASE, MX + 2))
    a("v_add_u32 v%d, %d, v%d" % (MX + 3, 32 * 1280, MX + 2))
    for st in range(4):
        for r in range(4, 8):
            a("v_mov_b32 v%d, 0" % (KF + st * 8 + r))
    a("v_cmp_eq_u32 vcc, 20, v7")
    a("v_cmp_eq_u32 s[44:45], 24, v7")
    a("s_or_b64 vcc, vcc, s[44:45]")
    a("v_mov_b32 v7, 0x3f803f80")
    a("s_nop 1")
    for r in range(16):
        a("v_cndmask_b32 v%d, 0, v7, vcc" % (VF + r))

    def kread(t, nset):
        kf = KF + (t % nset) * 8
        a("ds_read_b128 %s, v%d offset:%d" % (vr(kf, 4), 6 if t < 32 else 5, (t % 32) * 1280))
        a("s_mov_b64 exec, s[40:41]")
        a("ds_read_b64 %s, v%d offset:%d" % (vr(kf + 4, 2), 4 if t < 32 else 1, (t % 32) * 1280 + 1024))
        a("s_mov_b64 exec, -1")

    def smfma(t, c0, nset, nS, half):
        kf = KF + (t % nset) * 8
        S = SS + (t % nS) * 16
        if half == 0:
            a("v_mfma_f32_32x32x16_bf16 %s, %s, %s, %s" % (vr(S, 16), vr(kf, 4), vr(QF, 4), c0))
        else:
            a("v_mfma_f32_32x32x16_bf16 %s, %s, %s, %s" % (vr(S, 16), vr(kf + 4, 4), vr(QF + 4, 4), vr(S, 16)))

    def maxops(t, lo, hi):
        S = SS + (t % 3) * 16
        for r in range(lo, hi):
            m = MX + r % 2
            a("v_max3_f32 v%d, v%d, v%d, v%d" % (m, S + 2 * r, S + 2 * r + 1, m))

    PRIO = int(os.environ.get("PRIO", "0"))
    if PRIO:
        a("s_cmp_ge_u32 s8, 4")
        a("s_cbranch_scc1 L_att_np")
        a("s_setprio %d" % PRIO)
        a.label("L_att_np")
    for (t0, t1, lastc) in ((0, 16, ("K", 2)), (16, 64, ("V", 9))):
        a.vwait(lastc)
        a("s_barrier")
        stamp(a, 1 if t0 == 0 else 2)
        for t in range(t0, t0 + 3):
            kread(t, 4)
        for u in range(t0, t1 + 2):
            if u < t1:
                nout = min(2, t1 - 1 - u) * 2
                a("s_waitcnt lgkmcnt(%d)" % nout)
                if u + 3 < t1:
                    kread(u + 3, 4)
                smfma(u, "0", 4, 3, 0)
            if u - 2 >= t0:
                if u >= t1:
                    a("s_nop 7")
                maxops(u - 2, 0, 4)
            if u < t1:
                smfma(u, "0", 4, 3, 1)
            elif u == t1:
                a("s_nop 7")
            if u - 2 >= t0:
                maxops(u - 2, 4, 8)
    a("v_max_f32 v%d, v%d, v%d" % (MX, MX, MX + 1))
    a("v_mov_b32 v%d, v%d" % (MX + 1, MX))
    a("s_nop 1")
    a("v_permlane32_swap_b32 v%d, v%d" % (MX, MX + 1))
    a("s_nop 1")
    a("v_max_f32 v%d, v%d, v%d" % (MX, MX, MX + 1))
    for r in range(16):
        a("v_sub_f32 v%d, 0, v%d" % (NEGM + r, MX))
        a("v_mov_b32 v%d, 0" % (OA + r))

    def vread(t):
        vf = VF + (t % 2) * 8
        base = MX + 2 if t < 32 else MX + 3
        a("s_mov_b64 exec, s[42:43]")
        a("ds_read_b128 %s, v%d offset:%d" % (vr(vf, 4), base, (t % 32) * 1280))
        a("ds_read_b128 %s, v%d offset:%d" % (vr(vf + 4, 4), base, (t % 32) * 1280 + 640))
        a("s_mov_b64 exec, -1")

    def exps(t, lo, hi):
        S = SS + (t % 2) * 16
        for r in range(lo, hi):
            a("v_exp_f32 v%d, v%d" % (S + r, S + r))

    def cvts(t):
        S = SS + (t % 2) * 16
        pk = PK + (t % 2) * 8
        for r in range(8):
            a("v_cvt_pk_bf16_f32 v%d, v%d, v%d" % (pk + r, S + 2 * r, S + 2 * r + 1))

    def pv(t, half):
        vf = VF + (t % 2) * 8
        pk = PK + (t % 2) * 8
        a("v_mfma_f32_32x32x16_bf16 %s, %s, %s, %s" % (vr(OA, 16), vr(vf + 4 * half, 4), vr(pk + 4 * half, 4), vr(OA, 16)))

    stamp(a, 3)
    kread(0, 2)
    kread(1, 2)
    a("s_waitcnt lgkmcnt(2)")
    smfma(0, vr(NEGM, 16), 2, 2, 0)
    smfma(0, vr(NEGM, 16), 2, 2, 1)
    a("s_nop 7")
    for t in range(65):
        a("s_waitcnt lgkmcnt(0)")
        if t < 64:
            vread(t)
        if t + 2 < 64:
            kread(t + 2, 2)
        if t + 1 < 64:
            smfma(t + 1, vr(NEGM, 16), 2, 2, 0)
        if t < 64:
            exps(t, 0, 4)
        if t + 1 < 64:
            smfma(t + 1, vr(NEGM, 16), 2, 2, 1)
        if t < 64:
            exps(t, 4, 8)
        if t >= 1:
            pv(t - 1, 0)
        if t < 64:
            exps(t, 8, 12)
        if t >= 1:
            pv(t - 1, 1)
        if t < 64:
            exps(t, 12, 16)
            cvts(t)
    a("s_nop 15")
    a("s_nop 3")
    stamp(a, 4)
    stamp_flush(a, 5, 37)
    a("v_cmp_gt_u32 vcc, 32, v2")
    a("s_nop 1")
    a("v_cndmask_b32 v%d, v%d, v%d, vcc" % (MX, OA + 8, OA + 12))
    a("v_rcp_f32 v%d, v%d" % (MX, MX))
    a("s_nop 0")
    for r in range(16):
        a("v_mul_f32 v%d, v%d, v%d" % (OA + r, OA + r, MX))
    for r in range(8):
        a("v_cvt_pk_bf16_f32 v%d, v%d, v%d" % (PK + r, OA + 2 * r, OA + 2 * r + 1))
    a("s_mul_i32 s31, s6, 20")
    a("s_mul_i32 s32, s10, %d" % (40 * 1024))
    a("v_lshrrev_b32 v4, 5, v2")
    a("v_and_b32 v5, 31, v2")
    a("v_lshlrev_b32 v5, 4, v5")
    for g in range(3):
        a("s_add_u32 s35, s31, %d" % (8 * g))
        a("v_lshl_add_u32 v6, v4, 2, s35")
        a("v_lshrrev_b32 v7, 4, v6")
        a("v_lshl_add_u32 v7, v7, 10, v5")
        a("v_bfe_u32 v1, v6, 2, 1")
        a("v_lshl_add_u32 v7, v1, 9, v7")
        a("v_bfe_u32 v1, v6, 3, 1")
        a("v_lshl_add_u32 v7, v1, 3, v7")
        if g == 2:
            a("v_mov_b32 v1, 0x40000000")
            a("v_cndmask_b32 v7, v1, v7, vcc")
        a("buffer_store_dwordx2 %s, v7, s[24:27], s32 offen" % vr(PK + 2 * g, 2))
        a("s_nop 1")
    a.label("L_att_end")
    kernel_end(a, name, 256 if STAMP else 168)
    return "; @launch kernel=%s grid=(256,1,1) block=(512,1,1) lds=163840" % name


def gen_proj(a, name, offA, KSA, offW, final):
    KW = KSA // 4
    NWG = 256
    DP = min(10, KW)
    kernel_begin(a, name)
    a("s_load_dwordx2 s[4:5], s[0:1], 72")
    if final:
        a("s_load_dwordx2 s[44:45], s[0:1], 56")
    a("s_cmp_ge_u32 s2, %d" % NWG)
    a("s_cbranch_scc1 L_%s_end" % name)
    stamp(a, 0)
    a("s_and_b32 s6, s2, 7")
    a("s_lshr_b32 s7, s2, 3")
    a("s_lshr_b32 s8, s6, 1")
    a("s_lshl_b32 s8, s8, 4")
    a("s_lshr_b32 s9, s7, 1")
    a("s_add_u32 s8, s8, s9")
    a("s_and_b32 s9, s6, 1")
    a("s_lshl_b32 s9, s9, 1")
    a("s_and_b32 s7, s7, 1")
    a("s_add_u32 s9, s9, s7")
    a("v_lshrrev_b32 v1, 6, v0")
    a("v_and_b32 v0, 63, v0")
    a("s_nop 0")
    a("v_readfirstlane_b32 s10, v1")
    a("v_and_b32 v1, 31, v0")
    a("v_lshrrev_b32 v2, 5, v0")
    a("v_lshlrev_b32 v3, 4, v0")
    a("s_waitcnt lgkmcnt(0)")
    srd_ws(a, 12, 4, offA, 64 * KSA * 1024)
    srd_ws(a, 16, 4, offW, 20 * KSA * 1024)
    srd_ws(a, 20, 4, OFF_ST, 20 * 2048 * 8)
    srd_ws(a, 24, 4, OFF_X, 64 * 40 * 1024)
    if final:
        srd_ptr(a, 28, 44, 2048 * 640 * 2)
    a("s_mul_i32 s34, s10, %d" % (KW * 1024))
    a("s_mul_i32 s32, s8, %d" % (KSA * 1024))
    a("s_add_u32 s32, s32, s34")
    a("v_add_u32 v4, s32, v3")
    a("s_mul_i32 s33, s9, %d" % (5 * KSA * 1024))
    a("s_add_u32 s33, s33, s34")
    a("v_add_u32 v5, s33, v3")
    for j in range(1, 5):
        a("v_add_u32 v%d, 0x%x, v5" % (5 + j, j * KSA * 1024))
    ACC = 128
    a.vm = []

    def loads(ks):
        slot = (ks % DP) * 24
        if ks % 4 == 0:
            a("s_mov_b32 s40, 0x%x" % ((ks // 4) * 4096))
        imm = (ks % 4) * 1024
        a("buffer_load_dwordx4 %s, v4, s[12:15], s40 offen offset:%d" % (ar(slot, 4), imm))
        a.vissue(("k", ks))
        for j in range(5):
            a("buffer_load_dwordx4 %s, v%d, s[16:19], s40 offen offset:%d" % (ar(slot + 4 + 4 * j, 4), 5 + j, imm))
            a.vissue(("k", ks))

    for ks in range(DP):
        loads(ks)
    a("s_mul_i32 s38, s9, 5")
    a("s_add_u32 s36, s38, s10")
    a("s_add_u32 s37, s38, 4")
    a("s_mul_i32 s39, s8, 40")
    a("s_lshl_b32 s41, s36, 1")
    a("s_add_u32 s41, s41, s39")
    a("s_lshl_b32 s41, s41, 10")
    a("s_lshl_b32 s42, s37, 1")
    a("s_add_u32 s42, s42, s39")
    a("s_lshl_b32 s42, s42, 10")
    for ks in range(KW):
        a.vwait(("k", ks))
        if ks in (0, 8, 16):
            stamp(a, 1 + ks // 8)
        slot = (ks % DP) * 24
        for j in range(5):
            d = ACC + j * 16
            c = "0" if ks == 0 else vr(d, 16)
            a("v_mfma_f32_32x32x16_bf16 %s, %s, %s, %s" % (vr(d, 16), ar(slot + 4 + 4 * j, 4), ar(slot, 4), c))
        if ks + DP < KW:
            loads(ks + DP)
        if ks == max(0, KW - DP):
            a("buffer_load_dwordx4 v[12:15], v3, s[24:27], s41 offen")
            a("buffer_load_dwordx4 v[16:19], v3, s[24:27], s41 offen offset:1024")
            a("buffer_load_dwordx4 v[20:23], v3, s[24:27], s42 offen")
            a("buffer_load_dwordx4 v[24:27], v3, s[24:27], s42 offen offset:1024")
            for _ in range(4):
                a.vissue("x")
    a.vwait_all()
    stamp(a, 4)
    a("s_nop 15")
    a("s_mul_i32 s43, s10, 20480")
    a("v_add_u32 v10, s43, v3")
    for j in range(5):
        for q in range(4):
            a("ds_write_b128 v10, %s offset:%d" % (vr(ACC + 16 * j + 4 * q, 4), (j * 4 + q) * 1024))
    a("s_waitcnt lgkmcnt(0)")
    a("s_barrier")
    stamp(a, 5)

    def epi(tile_off_reg, XR, sct, sxoff):
        for src in range(4):
            for q in range(4):
                a("ds_read_b128 %s, v%d offset:%d" % (vr(32 + src * 16 + 4 * q, 4), tile_off_reg, src * 20480 + q * 1024))
        a("s_waitcnt lgkmcnt(0)")
        for r in range(0, 16, 2):
            a("v_pk_add_f32 %s, %s, %s" % (vr(32 + r, 2), vr(32 + r, 2), vr(48 + r, 2)))
            a("v_pk_add_f32 %s, %s, %s" % (vr(64 + r, 2), vr(64 + r, 2), vr(80 + r, 2)))
        for r in range(0, 16, 2):
            a("v_pk_add_f32 %s, %s, %s" % (vr(32 + r, 2), vr(32 + r, 2), vr(64 + r, 2)))
        for r in range(8):
            a("v_cvt_pk_bf16_f32 v%d, v%d, v%d" % (48 + r, 32 + 2 * r, 32 + 2 * r + 1))
        for r in range(8):
            a("v_lshlrev_b32 v%d, 16, v%d" % (32 + 2 * r, 48 + r))
            a("v_and_b32 v%d, 0xffff0000, v%d" % (32 + 2 * r + 1, 48 + r))
            a("v_lshlrev_b32 v%d, 16, v%d" % (64 + 2 * r, XR + r))
            a("v_and_b32 v%d, 0xffff0000, v%d" % (64 + 2 * r + 1, XR + r))
        for r in range(0, 16, 2):
            a("v_pk_add_f32 %s, %s, %s" % (vr(32 + r, 2), vr(32 + r, 2), vr(64 + r, 2)))
        for r in range(8):
            a("v_cvt_pk_bf16_f32 v%d, v%d, v%d" % (48 + r, 32 + 2 * r, 32 + 2 * r + 1))
        if final:
            a("s_lshl_b32 s46, s8, 5")
            a("v_add_u32 v96, s46, v1")
            a("s_movk_i32 s47, 1280")
            a("v_mul_lo_u32 v96, v96, s47")
            a("v_lshl_add_u32 v96, v2, 3, v96")
            a("s_lshl_b32 s47, s%d, 6" % sct)
            for g in range(4):
                a("buffer_store_dwordx2 %s, v96, s[28:31], s47 offen offset:%d" % (vr(48 + 2 * g, 2), g * 16))
        else:
            a("buffer_store_dwordx4 v[48:51], v3, s[24:27], s%d offen" % sxoff)
            a("buffer_store_dwordx4 v[52:55], v3, s[24:27], s%d offen offset:1024" % sxoff)
            a("v_mov_b32 v100, 0x3f803f80")
            a("v_mov_b32 v102, 0")
            a("v_mov_b32 v103, 0")
            for r in range(8):
                a("v_dot2_f32_bf16 v102, v%d, v100, v102" % (48 + r))
                a("v_dot2_f32_bf16 v103, v%d, v%d, v103" % (48 + r, 48 + r))
            a("s_nop 4")
            a("v_mov_b32 v104, v102")
            a("v_mov_b32 v105, v103")
            a("s_nop 1")
            a("v_permlane32_swap_b32 v104, v102")
            a("v_permlane32_swap_b32 v105, v103")
            a("s_nop 1")
            a("v_add_f32 v102, v102, v104")
            a("v_add_f32 v103, v103, v105")
            a("s_lshl_b32 s46, s8, 8")
            a("v_lshl_add_u32 v96, v1, 3, s46")
            a("s_lshl_b32 s47, s%d, 14" % sct)
            a("buffer_store_dwordx2 v[102:103], v96, s[20:23], s47 offen")
        a("s_nop 1")

    a("s_lshl_b32 s43, s10, 12")
    a("v_add_u32 v11, s43, v3")
    epi(11, 12, 36, 41)
    a("s_cmp_lg_u32 s10, 3")
    a("s_cbranch_scc1 L_%s_end" % name)
    a("v_add_u32 v11, 16384, v3")
    epi(11, 20, 37, 42)
    stamp(a, 6)
    stamp_flush(a, 7, 41)
    a.label("L_%s_end" % name)
    kernel_end(a, name, 256, agpr=DP * 24)
    return "; @launch kernel=%s grid=(%d,1,1) block=(256,1,1) lds=81920" % (name, NWG)


def gen_gu(a):
    name = "gu_kernel"
    NWG = 224
    DB = int(os.environ.get("DBG", "12"))
    kernel_begin(a, name)
    a("s_load_dwordx2 s[4:5], s[0:1], 72")
    a("s_cmp_ge_u32 s2, %d" % NWG)
    a("s_cbranch_scc1 L_gu_end")
    a("s_and_b32 s6, s2, 7")
    a("s_lshr_b32 s7, s2, 3")
    a("s_mul_hi_u32 s8, s7, 0x%x" % ((1 << 32) // 7 + 1))
    a("s_mul_i32 s9, s8, 7")
    a("s_sub_u32 s9, s7, s9")
    a("s_lshr_b32 s7, s6, 1")
    a("s_lshl_b32 s7, s7, 2")
    a("s_add_u32 s8, s8, s7")
    a("s_and_b32 s7, s6, 1")
    a("s_mul_i32 s7, s7, 7")
    a("s_add_u32 s9, s9, s7")
    a("v_lshrrev_b32 v1, 6, v0")
    a("v_and_b32 v0, 63, v0")
    a("s_nop 0")
    a("v_readfirstlane_b32 s10, v1")
    a("v_and_b32 v1, 31, v0")
    a("v_lshrrev_b32 v2, 5, v0")
    a("v_lshlrev_b32 v3, 4, v0")
    a("v_add_u32 v4, 0x10000, v3")
    a("v_add_u32 v5, 0x20000, v3")
    a("s_waitcnt lgkmcnt(0)")
    srd_ws(a, 12, 4, OFF_X, 64 * 40 * 1024)
    srd_ws(a, 16, 4, OFF_WG, 6 * MB)
    srd_ws(a, 20, 4, OFF_ST, 20 * 2048 * 8)
    srd_ws(a, 24, 4, OFF_CS + 16384, 32768)
    srd_ws(a, 28, 4, OFF_H, 64 * 108 * 1024)
    a("s_lshl_b32 s11, s9, 2")
    a("s_add_u32 s11, s11, s10")
    a("s_lshl_b32 s33, s8, 2")
    a("s_add_u32 s33, s33, s10")
    a("s_mul_i32 s34, s33, %d" % (40 * 1024))
    a("s_lshl_b32 s35, s10, 10")
    a("s_mul_i32 s36, s11, %d" % (40 * 1024))
    a("v_add_u32 v6, s36, v3")
    a("v_add_u32 v7, 0x%x, v6" % (3 * MB))
    a("s_lshl_b32 s36, s33, 8")
    a("v_lshl_add_u32 v9, v1, 3, s36")
    a("s_lshl_b32 s36, s11, 7")
    a("v_lshl_add_u32 v10, v2, 4, s36")
    a("v_add_u32 v12, 0x4000, v10")
    a("s_lshl_b32 s36, s10, 7")
    a("v_lshl_add_u32 v16, v1, 2, s36")
    SBASE, STOUT, AF, CSB, ACC = 20, 18, 60, 96, 128
    AF = 20
    CSB = 68
    SBASE = 100
    SBASE = 100
    vCS = [(10, 10), (12, 12)]
    a("s_cmp_ge_u32 s11, 54")
    a("s_cbranch_scc1 L_gu_idle")
    a.vm = []
    astat_prologue(a, 4, 2, DB, 12, 16, [6, 7], 34, 35, 3)
    astat_loop(a, 4, 2, DB, 16, [6, 7], 3, AF, ACC, [True, True], 16, STOUT,
               astat_side(a, 20, 9, SBASE, 24, vCS, CSB, [True, True], 2, STOUT))
    a.vwait_all()
    a("v_lshlrev_b32 v17, 2, v1")
    for i in range(4):
        a("ds_read_b32 v%d, v17 offset:%d" % (100 + 2 * i, i * 128))
        a("ds_read_b32 v%d, v17 offset:%d" % (108 + 2 * i, 512 + i * 128))
    a("s_mul_i32 s37, s8, %d" % (4 * 108 * 1024))
    a("s_lshl_b32 s38, s11, 11")
    a("s_add_u32 s37, s37, s38")
    K1 = -2.0 * LOG2E * 0.7978845608028654
    K2 = K1 * 0.044715
    a("v_mov_b32 v116, %s" % fhex(K1))
    a("v_mov_b32 v118, %s" % fhex(K2))
    a("v_mov_b32 v120, 1.0")
    a("s_waitcnt lgkmcnt(0)")
    a("s_nop 7")
    BC = " op_sel_hi:[1,0]"
    BC3 = " op_sel_hi:[0,1,1]"
    for i in range(4):
        dg = ACC + (i * 2 + 0) * 16
        du = ACC + (i * 2 + 1) * 16
        csg, csu = CSB, CSB + 16
        ri, nm = vr(100 + 2 * i, 2), vr(108 + 2 * i, 2)
        T = 20
        for r in range(0, 16, 2):
            a("v_pk_mul_f32 %s, %s, %s%s" % (vr(dg + r, 2), vr(dg + r, 2), ri, BC))
            a("v_pk_mul_f32 %s, %s, %s%s" % (vr(du + r, 2), vr(du + r, 2), ri, BC))
        for r in range(0, 16, 2):
            a("v_pk_fma_f32 %s, %s, %s, %s%s" % (vr(dg + r, 2), nm, vr(csg + r, 2), vr(dg + r, 2), BC3))
            a("v_pk_fma_f32 %s, %s, %s, %s%s" % (vr(du + r, 2), nm, vr(csu + r, 2), vr(du + r, 2), BC3))
        for r in range(0, 16, 2):
            a("v_pk_mul_f32 %s, %s, %s" % (vr(T + r, 2), vr(dg + r, 2), vr(dg + r, 2)))
        for r in range(0, 16, 2):
            a("v_pk_fma_f32 %s, %s, %s, %s op_sel_hi:[1,0,0]" % (vr(T + r, 2), vr(T + r, 2), vr(118, 2), vr(116, 2)))
        for r in range(0, 16, 2):
            a("v_pk_mul_f32 %s, %s, %s" % (vr(T + r, 2), vr(T + r, 2), vr(dg + r, 2)))
        for r in range(16):
            a("v_exp_f32 v%d, v%d" % (T + r, T + r))
        for r in range(0, 16, 2):
            a("v_pk_mul_f32 %s, %s, %s" % (vr(dg + r, 2), vr(dg + r, 2), vr(du + r, 2)))
        for r in range(0, 16, 2):
            a("v_pk_add_f32 %s, %s, %s%s" % (vr(T + r, 2), vr(T + r, 2), vr(120, 2), BC))
        for r in range(16):
            a("v_rcp_f32 v%d, v%d" % (T + r, T + r))
        a("s_nop 0")
        for r in range(0, 16, 2):
            a("v_pk_mul_f32 %s, %s, %s" % (vr(T + r, 2), vr(T + r, 2), vr(dg + r, 2)))
        for r in range(8):
            a("v_cvt_pk_bf16_f32 v%d, v%d, v%d" % (dg + r, T + 2 * r, T + 2 * r + 1))
        a("s_add_u32 s42, s37, 0x%x" % (i * 108 * 1024))
        a("buffer_store_dwordx4 %s, v3, s[28:31], s42 offen" % vr(dg, 4))
        a("buffer_store_dwordx4 %s, v3, s[28:31], s42 offen offset:1024" % vr(dg + 4, 4))
    a("s_branch L_gu_end")
    a.label("L_gu_idle")
    a.vm = []
    astat_prologue(a, 4, 2, DB, 12, 16, [6, 7], 34, 35, 3, active=False)
    astat_loop(a, 4, 2, DB, 16, [6, 7], 3, AF, ACC, [True, True], 16, STOUT,
               astat_side(a, 20, 9, SBASE, 24, vCS, CSB, [True, True], 2, STOUT, active=False), active=False)
    a("s_waitcnt vmcnt(0) lgkmcnt(0)")
    a.label("L_gu_end")
    kernel_end(a, name, 256, agpr=DB * 8)
    return "; @launch kernel=%s grid=(%d,1,1) block=(256,1,1) lds=163840" % (name, NWG)


def main():
    a = Asm()
    l_prep = gen_prep(a)
    l_qkv = gen_qkv(a)
    l_att = gen_attn(a)
    l_wo = gen_proj(a, "wo_kernel", OFF_O, 40, OFF_WO, False)
    l_gu = gen_gu(a)
    l_dn = gen_proj(a, "down_kernel", OFF_H, 108, OFF_WD, False)
    l_dnf = gen_proj(a, "downf_kernel", OFF_H, 108, OFF_WD, True)
    launches = [l_prep, l_qkv, l_att, l_wo, l_gu, l_dn, l_qkv, l_att, l_wo, l_gu, l_dnf]
    out = []
    out += launches
    out.append('.amdgcn_target "amdgcn-amd-amdhsa--gfx950"')
    out.append(".text")
    out.append(a.text())
    out.append('.section .rodata,"a"')
    out.append(".p2align 6")
    for d in DESCS:
        out.append(".p2align 6" + d)
    sf = os.environ.get("STOREFLAGS", "")
    if sf:
        txt = "\n".join(out)
        import re
        txt = re.sub(r"(buffer_store_dword\w* [^\n]*)", lambda m: m.group(1) + " " + sf, txt)
        out = txt.split("\n")
    path = sys.argv[1] if len(sys.argv) > 1 else "cdna_kernels/%s.s" % NAME
    open(path, "w").write("\n".join(out) + "\n")


if __name__ == "__main__":
    main()
```
